```python
import torch

def _softmax(x, axis=-1):
    return torch.softmax(x, dim=axis)
def _gelu(x):
    return torch.nn.functional.gelu(x, approximate="tanh")
def _silu(x):
    return torch.nn.functional.silu(x)
def _sigmoid(x):
    return torch.sigmoid(x)
def _layernorm(x, axis=-1, eps=1e-5):
    m = x.mean(dim=axis, keepdim=True)
    v = x.var(dim=axis, keepdim=True, unbiased=False)
    return (x - m) / torch.sqrt(v + eps)
def _scatter_add(tgt, idx, src, axis=0):
    return tgt.clone().index_add_(axis, idx, src)
def _segment_sum(src, seg, n):
    out = torch.zeros((n,) + src.shape[1:], dtype=src.dtype)
    return out.index_add_(0, seg, src)
def _pad(x, pw):
    flat = tuple(v for pair in reversed(pw) for v in pair)
    return torch.nn.functional.pad(x, flat)

kernel_name = 'sequential_preLN__sliding_block__dense_activation_gelu__prompt'

def setup_inputs():

    _w = (lambda a: (lambda t: t.to(torch.bfloat16) if t.is_floating_point() else t)(torch.as_tensor(a)))
    def _A_setup():
        B, S, D = 1, 2048, 512
        return {
            "x": _w((lambda *s: torch.randn(*s, dtype=torch.bfloat16) * 0.05)(B, S, D)),
            "wqkv": _w((lambda *s: torch.randn(*s, dtype=torch.bfloat16) * 0.05)(D, 3 * D)),
            "wo": _w((lambda *s: torch.randn(*s, dtype=torch.bfloat16) * 0.05)(D, D)),
        }
    _A_in = _A_setup()

    def _B_setup():
        B, S, D, F = 1, 2048, 512, 1376
        return {
            "x": _w((lambda *s: torch.randn(*s, dtype=torch.bfloat16) * 0.05)(B, S, D)),
            "w1": _w((lambda *s: torch.randn(*s, dtype=torch.bfloat16) * 0.8)(D, F) * (D ** -0.5)),
            "b1": _w((lambda *s: torch.randn(*s, dtype=torch.bfloat16) * 0.8)(F) * 0.01),
            "w2": _w((lambda *s: torch.randn(*s, dtype=torch.bfloat16) * 0.8)(F, D) * (F ** -0.5)),
            "b2": _w((lambda *s: torch.randn(*s, dtype=torch.bfloat16) * 0.8)(D) * 0.01),
        }
    _B_in = _B_setup()

    return {
        "A_x": _A_in["x"],
        "A_wqkv": _A_in["wqkv"],
        "A_wo": _A_in["wo"],
        "B_x": _B_in["x"],
        "B_w1": _B_in["w1"],
        "B_b1": _B_in["b1"],
        "B_w2": _B_in["w2"],
        "B_b2": _B_in["b2"],
    }

def reference(A_x, A_wqkv, A_wo, B_x, B_w1, B_b1, B_w2, B_b2):
    def _A_ref(x, wqkv, wo):
        B, S, D = x.shape
        H = 32; Dh = D // H; W = 256
        qkv = (lambda x, *d: x.permute(*d))((x @ wqkv).reshape(B, S, 3, H, Dh), 2, 0, 3, 1, 4)
        q, k, v = qkv[0], qkv[1], qkv[2]
        scores = torch.einsum("bhqd,bhkd->bhqk", q, k) * (Dh ** -0.5)
        idx = torch.arange(S)
        mask = (idx[:, None] - idx[None, :] >= 0) & (idx[:, None] - idx[None, :] < W)
        scores = torch.where(mask[None, None], scores, -1e9)
        p = _softmax(scores, axis=-1)
        o = torch.einsum("bhqk,bhkd->bhqd", p, v)
        return (lambda x, *d: x.permute(*d))(o, 0, 2, 1, 3).reshape(B, S, D) @ wo

    def _B_ref(x, w1, b1, w2, b2):
        h = torch.einsum("bsd,df->bsf", x, w1) + b1
        h = _gelu(h)
        return torch.einsum("bsf,fd->bsd", h, w2) + b2

    x = A_x
    h = x + _A_ref(_layernorm(x, axis=-1), A_wqkv, A_wo)
    h2 = h + _B_ref(_layernorm(h, axis=-1), B_w1, B_b1, B_w2, B_b2)
    return h2
```

```python
import sys

NAME = "sequential_preLN__sliding_block__dense_activation_gelu__prompt"

MB = 1 << 20
QF_OFF = 0 * MB
KF_OFF = 2 * MB
VF_OFF = 4 * MB
OF_OFF = 6 * MB
HF_OFF = 8 * MB
H1_OFF = 10 * MB
WS_BYTES = 256 * MB

LOG2E = 1.4426950408889634
QSCALE = 0.25 * LOG2E

import struct
def f2u(x):
    return struct.unpack("<I", struct.pack("<f", x))[0]

class Asm:
    def __init__(self):
        self.L = []
        self.uid = 0
    def __call__(self, s):
        for line in s.strip("\n").split("\n"):
            self.L.append(line.strip() if not line.strip().endswith(":") else line.strip())
    def label(self, base):
        self.uid += 1
        return f"L_{base}_{self.uid}"
    def text(self):
        return "\n".join(self.L) + "\n"

def vr(b, n):
    return f"v[{b}:{b+n-1}]" if n > 1 else f"v{b}"

S_WG = 2
S_J = 3
S_I = 4
S_W = 5
S_T0 = 6
SRD_WS = 8
SRD_WT = 12
SRD_X = 16
SRD_O = 20
P_X, P_WQKV, P_WO, P_BX, P_W1, P_B1, P_W2, P_B2, P_OUT, P_DBG, P_WS = [64 + 2*i for i in range(11)]

V_LANE = 1

def srd(A, s, ptr, nbytes):
    A(f"s_mov_b32 s{s}, s{ptr}")
    A(f"s_mov_b32 s{s+1}, s{ptr+1}")
    A(f"s_mov_b32 s{s+2}, {nbytes}")
    A(f"s_mov_b32 s{s+3}, 0x20000")

def prologue(A, kname):
    A(f".globl {kname}\n.p2align 8\n.type {kname},@function\n{kname}:")
    A(f"s_cmp_ge_u32 s2, 256")
    A(f"s_cbranch_scc1 L_exit_{kname}")
    A("s_load_dwordx16 s[64:79], s[0:1], 0")
    A("s_load_dwordx4 s[80:83], s[0:1], 64")
    A("s_load_dwordx2 s[84:85], s[0:1], 80")
    A(f"v_and_b32 v{V_LANE}, 63, v0")
    A("v_lshrrev_b32 v2, 6, v0")
    A(f"s_and_b32 s{S_J}, s2, 7")
    A(f"v_readfirstlane_b32 s{S_W}, v2")
    A(f"s_lshr_b32 s{S_I}, s2, 3")
    A("s_waitcnt lgkmcnt(0)")
    srd(A, SRD_WS, P_WS, WS_BYTES)

def epilogue_end(A, kname):
    A(f"L_exit_{kname}:")
    A("s_endpgm")

def kd(A, kname, vgpr=256, sgpr=96):
    A(f".p2align 6\n.amdhsa_kernel {kname}")
    A(f"  .amdhsa_next_free_vgpr {vgpr}\n  .amdhsa_next_free_sgpr {sgpr}\n  .amdhsa_accum_offset {((vgpr+3)//4)*4}")
    A("  .amdhsa_group_segment_fixed_size 0\n  .amdhsa_kernarg_size 88\n  .amdhsa_user_sgpr_count 2")
    A("  .amdhsa_user_sgpr_kernarg_segment_ptr 1\n  .amdhsa_system_sgpr_workgroup_id_x 1\n.end_amdhsa_kernel")

def gemm3(A, mode):
    qkv = (mode == "qkv")
    XF = 64
    ACC = 128
    WF = 176
    V_WA0 = 2
    V_WA2 = 3
    V_T = 4
    V_SUM, V_SQ = 16, 17
    V_CS = 18
    V_XA = 24
    V_DM = 32
    V_E = 200
    WROW = 3072 if qkv else 2752
    LDS_X = 96 * 1024

    A(f"s_lshr_b32 s24, s{S_I}, 4")
    A(f"s_lshl_b32 s25, s{S_J}, 1")
    A(f"s_add_u32 s24, s24, s25")
    A(f"s_and_b32 s25, s{S_I}, 15")
    A(f"s_and_b32 s26, s{S_W}, 3")
    A(f"s_lshr_b32 s27, s{S_W}, 2")
    if not qkv:
        A("s_cmp_ge_u32 s25, 15")
        A(f"s_cbranch_scc1 L_end_{mode}")
    if qkv:
        srd(A, SRD_WT, P_WQKV, 512*1536*2)
        srd(A, SRD_X, P_X, 2048*512*2)
    else:
        srd(A, SRD_WT, P_W1, 512*1376*2)
        srd(A, SRD_O, P_B1, 1376*2)
    A("s_lshl_b32 s28, s24, 2")
    A("s_add_u32 s28, s28, s26")

    if qkv:
        A(f"v_lshrrev_b32 v{V_T}, 4, v{V_LANE}")
        A(f"v_and_b32 v{V_T+1}, 15, v{V_LANE}")
        A(f"v_xor_b32 v{V_T+1}, v{V_T+1}, v{V_T}")
        A(f"v_lshlrev_b32 v{V_T+1}, 4, v{V_T+1}")
        A(f"v_lshlrev_b32 v{V_T}, 10, v{V_T}")
        A(f"v_add_u32 v{V_DM}, v{V_T}, v{V_T+1}")
        for m in range(1, 4):
            A(f"v_xor_b32 v{V_DM+m}, {64*m}, v{V_DM}")
        A("s_lshl_b32 s29, s28, 15")
        A("s_lshl_b32 s30, s27, 9")
        A("s_add_u32 s29, s29, s30")
        A(f"s_lshl_b32 s30, s{S_W}, 13")
        A(f"s_add_u32 s30, s30, {LDS_X}")
        def xdma(stage):
            for q in range(8):
                A(f"s_add_u32 m0, s30, {q*1024}")
                A(f"s_add_u32 s31, s29, {stage*256 + q*4096}")
                A(f"buffer_load_dwordx4 v{V_DM + q%4}, s[{SRD_X}:{SRD_X+3}], s31 offen lds")
        xdma(0)
    else:
        A(f"v_lshlrev_b32 v{V_T}, 4, v{V_LANE}")
        A("s_lshl_b32 s29, s28, 5")
        A("s_lshl_b32 s30, s27, 4")
        A("s_add_u32 s29, s29, s30")
        A("s_lshl_b32 s29, s29, 10")
        A(f"s_add_u32 s29, s29, {HF_OFF}")
    A(f"v_lshrrev_b32 v{V_T+2}, 2, v{V_LANE}")
    A(f"s_movk_i32 s32, {WROW}")
    A(f"v_mul_lo_u32 v{V_T+2}, v{V_T+2}, s32")
    A(f"v_and_b32 v{V_T+3}, 3, v{V_LANE}")
    A(f"v_lshlrev_b32 v{V_T+3}, 4, v{V_T+3}")
    A(f"v_add_u32 v{V_T+2}, v{V_T+2}, v{V_T+3}")
    A("s_lshl_b32 s33, s27, 8")
    A("s_lshl_b32 s34, s26, 5")
    A("s_add_u32 s33, s33, s34")
    A(f"s_mul_i32 s34, s33, {WROW}")
    A(f"s_mul_i32 s35, s25, {64 if qkv else 192}")
    A("s_add_u32 s34, s34, s35")
    A("s_lshl_b32 s35, s33, 6")
    for part in range(2):
        for t in range(3):
            for h in range(2):
                krel = 128*part + 16*h
                A(f"s_add_u32 m0, s35, {t*32768 + krel*64}")
                A(f"s_add_u32 s31, s34, {krel*WROW + t*(1024 if qkv else 64)}")
                A(f"buffer_load_dwordx4 v{V_T+2}, s[{SRD_WT}:{SRD_WT+3}], s31 offen lds")
    if not qkv:
        for s in range(16):
            A(f"buffer_load_dwordx4 {vr(XF+4*s,4)}, v{V_T}, s[{SRD_WS}:{SRD_WS+3}], s29 offen offset:{(s%4)*1024}")
            if s % 4 == 3:
                A("s_add_u32 s29, s29, 4096")
    A(f"v_lshrrev_b32 v{V_T+4}, 5, v{V_LANE}")
    A(f"v_lshlrev_b32 v{V_T+4}, {9 if qkv else 8}, v{V_T+4}")
    A(f"v_bfe_u32 v{V_T+5}, v{V_LANE}, 2, 2")
    A(f"v_lshlrev_b32 v{V_T+5}, 6, v{V_T+5}")
    A(f"v_add_u32 v{V_T+4}, v{V_T+4}, v{V_T+5}")
    A(f"v_bfe_u32 v{V_T+5}, v{V_LANE}, 4, 1")
    A(f"v_lshlrev_b32 v{V_T+5}, 5, v{V_T+5}")
    A(f"v_add_u32 v{V_T+4}, v{V_T+4}, v{V_T+5}")
    A(f"v_and_b32 v{V_T+5}, 3, v{V_LANE}")
    A(f"v_lshlrev_b32 v{V_T+5}, 3, v{V_T+5}")
    A(f"v_add_u32 v{V_T+4}, v{V_T+4}, v{V_T+5}")
    A("s_lshl_b32 s36, s27, 14")
    A(f"v_add_u32 v{V_WA0}, s36, v{V_T+4}")
    A(f"v_add_u32 v{V_WA2}, 0x10000, v{V_WA0}")
    R2 = 256 if qkv else 512
    for r in range(48):
        A(f"v_mov_b32 v{ACC+r}, 0")
    for r in [V_SUM, V_SQ, V_CS, V_CS+1, V_CS+2]:
        A(f"v_mov_b32 v{r}, 0")
    A("s_mov_b32 s37, 0x3f803f80")
    if qkv:
        A(f"v_and_b32 v{V_T+5}, 31, v{V_LANE}")
        A(f"v_lshlrev_b32 v{V_T+6}, 8, v{V_T+5}")
        A(f"v_and_b32 v{V_T+5}, 15, v{V_T+5}")
        A(f"v_lshrrev_b32 v{V_T+7}, 5, v{V_LANE}")
        A(f"v_xor_b32 v{V_T+5}, v{V_T+5}, v{V_T+7}")
        A(f"v_lshlrev_b32 v{V_T+5}, 4, v{V_T+5}")
        A(f"v_add_u32 v{V_T+5}, v{V_T+5}, v{V_T+6}")
        A(f"v_add_u32 v{V_XA}, s30, v{V_T+5}")
        for k in range(1, 8):
            A(f"v_xor_b32 v{V_XA+k}, {32*k}, v{V_XA}")

    def stats(s0, s1):
        for s in range(s0, s1):
            for d in range(4):
                A(f"v_dot2c_f32_bf16 v{V_SUM}, s37, v{XF+4*s+d}")
                A(f"v_dot2c_f32_bf16 v{V_SQ}, v{XF+4*s+d}, v{XF+4*s+d}")

    def wread(setidx, s):
        for t in range(3):
            base = WF + 12*setidx + 4*t
            a = V_WA2 if t == 2 else V_WA0
            off = (t*32768 if t < 2 else 0) + s*1024
            A(f"ds_read_b64_tr_b16 {vr(base,2)}, v{a} offset:{off}")
            A(f"ds_read_b64_tr_b16 {vr(base+2,2)}, v{a} offset:{off+R2}")

    def colsum_pass(part):
        A("s_lshl_b32 s38, s26, 10")
        A(f"v_add_u32 v{V_T+8}, s38, v{V_WA0}")
        A(f"v_add_u32 v{V_T+9}, s38, v{V_WA2}")
        for u in range(2):
            s = 8*part + 4*u
            for t in range(3):
                base = WF + 12*u + 4*t
                a = V_T+9 if t == 2 else V_T+8
                off = (t*32768 if t < 2 else 0) + s*1024
                A(f"ds_read_b64_tr_b16 {vr(base,2)}, v{a} offset:{off}")
                A(f"ds_read_b64_tr_b16 {vr(base+2,2)}, v{a} offset:{off+R2}")
        for u in range(2):
            A(f"s_waitcnt lgkmcnt({6 if u == 0 else 0})")
            for t in range(3):
                for d in range(4):
                    A(f"v_dot2c_f32_bf16 v{V_CS+t}, s37, v{WF+12*u+4*t+d}")

    def mainloop(part):
        s0 = 8*part
        wread(0, s0)
        for s in range(s0, s0+8):
            cur = (s - s0) % 2
            if s + 1 < s0 + 8:
                wread(1-cur, s+1)
                A("s_waitcnt lgkmcnt(6)")
            else:
                A("s_waitcnt lgkmcnt(0)")
            x = vr(XF+4*s, 4)
            for t in range(3):
                w = vr(WF+12*cur+4*t, 4)
                acc = vr(ACC+16*t, 16)
                if qkv and t == 2:
                    A(f"v_mfma_f32_32x32x16_bf16 {acc}, {x}, {w}, {acc}")
                else:
                    A(f"v_mfma_f32_32x32x16_bf16 {acc}, {w}, {x}, {acc}")

    if qkv:
        A("s_waitcnt vmcnt(12)")
        for s in range(8):
            A(f"ds_read_b128 {vr(XF+4*s,4)}, v{V_XA+s}")
        A("s_waitcnt lgkmcnt(0)")
        xdma(1)
        stats(0, 8)
        A("s_waitcnt vmcnt(14)")
        A("s_barrier")
        colsum_pass(0)
        mainloop(0)
        A("s_waitcnt vmcnt(0)")
        for s in range(8):
            A(f"ds_read_b128 {vr(XF+4*(8+s),4)}, v{V_XA+s}")
        A("s_barrier")
        A("s_waitcnt lgkmcnt(0)")
        stats(8, 16)
        colsum_pass(1)
        mainloop(1)
    else:
        A("s_waitcnt vmcnt(22)")
        A("s_barrier")
        colsum_pass(0)
        A("s_waitcnt vmcnt(8)")
        stats(0, 8)
        mainloop(0)
        A("s_waitcnt vmcnt(0)")
        A("s_barrier")
        colsum_pass(1)
        stats(8, 16)
        mainloop(1)

    EX, ST, CSP, PRV = 0, 49152, 53248, 61440
    A("s_nop 7")
    A("s_barrier")
    A(f"v_lshlrev_b32 v{V_T}, 4, v{V_LANE}")
    A(f"s_mul_i32 s38, s{S_W}, 6144")
    A(f"v_add_u32 v{V_T+1}, s38, v{V_T}")
    lab_k1 = A.label("k1"); lab_j = A.label("j")
    A("s_nop 7")
    A("s_cmp_eq_u32 s27, 1")
    A(f"s_cbranch_scc1 {lab_k1}")
    for c in range(4):
        A(f"ds_write_b128 v{V_T+1}, {vr(ACC+16+4*c,4)} offset:{EX + c*1024}")
    for c in range(2):
        A(f"ds_write_b128 v{V_T+1}, {vr(ACC+32+8+4*c,4)} offset:{EX + (4+c)*1024}")
    A(f"s_branch {lab_j}")
    A(f"{lab_k1}:")
    for c in range(4):
        A(f"ds_write_b128 v{V_T+1}, {vr(ACC+4*c,4)} offset:{EX + c*1024}")
    for c in range(2):
        A(f"ds_write_b128 v{V_T+1}, {vr(ACC+32+4*c,4)} offset:{EX + (4+c)*1024}")
    A("s_waitcnt lgkmcnt(0)")
    for r in range(16):
        A(f"v_mov_b32 v{ACC+r}, v{ACC+16+r}")
    for r in range(8):
        A(f"v_mov_b32 v{ACC+32+r}, v{ACC+40+r}")
    A(f"{lab_j}:")
    A(f"v_lshlrev_b32 v{V_T+2}, 3, v{V_LANE}")
    A(f"s_lshl_b32 s38, s{S_W}, 9")
    A(f"v_add_u32 v{V_T+2}, s38, v{V_T+2}")
    A(f"ds_write_b64 v{V_T+2}, {vr(V_SUM,2)} offset:{ST}")
    A(f"v_lshlrev_b32 v{V_T+3}, 2, v{V_LANE}")
    A(f"s_mul_i32 s38, s{S_W}, 768")
    A(f"v_add_u32 v{V_T+3}, s38, v{V_T+3}")
    for t in range(3):
        A(f"ds_write_b32 v{V_T+3}, v{V_CS+t} offset:{CSP + t*256}")
    A("s_waitcnt lgkmcnt(0)")
    A("s_barrier")
    A(f"s_xor_b32 s38, s{S_W}, 4")
    A(f"s_mul_i32 s38, s38, 6144")
    A(f"v_add_u32 v{V_T+1}, s38, v{V_T}")
    E = V_E
    for c in range(6):
        A(f"ds_read_b128 {vr(E+4*c,4)}, v{V_T+1} offset:{EX + c*1024}")
    A(f"v_and_b32 v{V_T+2}, 31, v{V_LANE}")
    A(f"v_lshlrev_b32 v{V_T+2}, 3, v{V_T+2}")
    A("s_lshl_b32 s38, s26, 9")
    A(f"v_add_u32 v{V_T+2}, s38, v{V_T+2}")
    S0 = E + 24
    A(f"ds_read_b64 {vr(S0,2)}, v{V_T+2} offset:{ST}")
    A(f"ds_read_b64 {vr(S0+2,2)}, v{V_T+2} offset:{ST+256}")
    A(f"ds_read_b64 {vr(S0+4,2)}, v{V_T+2} offset:{ST+2048}")
    A(f"ds_read_b64 {vr(S0+6,2)}, v{V_T+2} offset:{ST+2048+256}")
    C0 = E + 32
    A(f"v_lshlrev_b32 v{V_T+3}, 2, v{V_LANE}")
    A("s_lshl_b32 s38, s27, 8")
    A(f"v_add_u32 v{V_T+4}, s38, v{V_T+3}")
    for w in range(8):
        A(f"ds_read_b32 v{C0+w}, v{V_T+4} offset:{CSP + w*768}")
    A("s_waitcnt lgkmcnt(0)")
    for w in range(8):
        A(f"ds_read_b32 v{C0+8+w}, v{V_T+3} offset:{CSP + w*768 + 512}")
    for r in range(16):
        A(f"v_add_f32 v{ACC+r}, v{ACC+r}, v{E+r}")
    for r in range(8):
        A(f"v_add_f32 v{ACC+32+r}, v{ACC+32+r}, v{E+16+r}")
    A(f"v_add_f32 v{S0}, v{S0}, v{S0+2}")
    A(f"v_add_f32 v{S0+4}, v{S0+4}, v{S0+6}")
    A(f"v_add_f32 v{S0}, v{S0}, v{S0+4}")
    A(f"v_add_f32 v{S0+1}, v{S0+1}, v{S0+3}")
    A(f"v_add_f32 v{S0+5}, v{S0+5}, v{S0+7}")
    A(f"v_add_f32 v{S0+1}, v{S0+1}, v{S0+5}")
    A(f"v_mul_f32 v{S0}, {f2u(1.0/512):#x}, v{S0}")
    A(f"v_mul_f32 v{S0+1}, {f2u(1.0/512):#x}, v{S0+1}")
    A(f"v_fma_f32 v{S0+1}, -v{S0}, v{S0}, v{S0+1}")
    A(f"v_max_f32 v{S0+1}, 0, v{S0+1}")
    A(f"v_add_f32 v{S0+1}, {f2u(1e-5):#x}, v{S0+1}")
    A(f"v_rsq_f32 v{S0+1}, v{S0+1}")
    A("s_nop 0")
    A(f"v_mul_f32 v{S0}, v{S0}, v{S0+1}")
    for w in range(1, 8):
        A(f"v_add_f32 v{C0}, v{C0}, v{C0+w}")
    A(f"v_mov_b32 v{C0+1}, v{C0}")
    A("s_nop 1")
    A(f"v_permlane32_swap_b32 v{C0}, v{C0+1}")
    A("s_nop 1")
    A(f"v_add_f32 v{C0}, v{C0}, v{C0+1}")
    A("s_waitcnt lgkmcnt(0)")
    for w in range(1, 8):
        A(f"v_add_f32 v{C0+8}, v{C0+8}, v{C0+8+w}")
    A(f"v_mov_b32 v{C0+9}, v{C0+8}")
    A("s_nop 1")
    A(f"v_permlane32_swap_b32 v{C0+8}, v{C0+9}")
    A("s_nop 1")
    A(f"v_add_f32 v{C0+8}, v{C0+8}, v{C0+9}")
    A(f"v_and_b32 v{V_T+5}, 31, v{V_LANE}")
    A(f"s_lshl_b32 s38, s{S_W}, 10")
    A(f"v_lshlrev_b32 v{V_T+6}, 3, v{V_T+5}")
    A(f"v_add_u32 v{V_T+6}, s38, v{V_T+6}")
    A(f"ds_write_b64 v{V_T+6}, {vr(S0,2)} offset:{PRV}")
    A(f"v_lshlrev_b32 v{V_T+6}, 2, v{V_T+5}")
    A(f"v_add_u32 v{V_T+6}, s38, v{V_T+6}")
    A(f"ds_write_b32 v{V_T+6}, v{C0} offset:{PRV+256}")
    A(f"ds_write_b32 v{V_T+6}, v{C0+8} offset:{PRV+384}")
    A(f"v_lshrrev_b32 v{V_T+7}, 5, v{V_LANE}")
    A(f"v_lshlrev_b32 v{V_T+8}, 4, v{V_T+7}")
    A(f"v_add_u32 v{V_T+8}, s38, v{V_T+8}")
    A("s_waitcnt lgkmcnt(0)")
    CSR = XF
    for j in range(4):
        A(f"ds_read_b128 {vr(CSR+4*j,4)}, v{V_T+8} offset:{PRV+256 + j*32}")
    if qkv:
        RS = XF + 16
        A(f"v_lshlrev_b32 v{V_T+9}, 5, v{V_T+7}")
        A("s_lshl_b32 s39, s27, 7")
        A("s_add_u32 s39, s39, s38")
        A(f"v_add_u32 v{V_T+9}, s39, v{V_T+9}")
        for jj in range(2):
            A(f"ds_read_b128 {vr(RS+8*jj,4)}, v{V_T+9} offset:{PRV + jj*64}")
            A(f"ds_read_b128 {vr(RS+8*jj+4,4)}, v{V_T+9} offset:{PRV + jj*64 + 16}")
        A("s_waitcnt lgkmcnt(0)")
        A(f"s_cmp_eq_u32 s27, 0")
        A(f"s_cselect_b32 s39, {f2u(QSCALE):#x}, 1.0")
        A(f"v_mul_f32 v{S0+2}, s39, v{S0+1}")
        A(f"v_mul_f32 v{S0+3}, s39, v{S0}")
        for r in range(16):
            A(f"v_mul_f32 v{ACC+r}, v{ACC+r}, v{S0+2}")
            A(f"v_fma_f32 v{ACC+r}, -v{S0+3}, v{CSR+r}, v{ACC+r}")
        for p in range(8):
            A(f"v_cvt_pk_bf16_f32 v{E+p}, v{ACC+2*p}, v{ACC+2*p+1}")
        A("s_lshl_b32 s40, s28, 5")
        A("s_lshl_b32 s41, s25, 1")
        A("s_add_u32 s40, s40, s41")
        A("s_lshl_b32 s40, s40, 10")
        A(f"s_mul_i32 s41, s27, {KF_OFF - QF_OFF}")
        A("s_add_u32 s41, s41, s40")
        if QF_OFF: A(f"s_add_u32 s41, s41, {QF_OFF}")
        A(f"buffer_store_dwordx4 {vr(E,4)}, v{V_T}, s[{SRD_WS}:{SRD_WS+3}], s41 offen")
        A(f"buffer_store_dwordx4 {vr(E+4,4)}, v{V_T}, s[{SRD_WS}:{SRD_WS+3}], s41 offen offset:1024")
        for r in range(8):
            A(f"v_mul_f32 v{ACC+32+r}, v{ACC+32+r}, v{RS+2*r+1}")
            A(f"v_fma_f32 v{ACC+32+r}, -v{RS+2*r}, v{C0+8}, v{ACC+32+r}")
        for p in range(4):
            A(f"v_cvt_pk_bf16_f32 v{E+8+p}, v{ACC+32+2*p}, v{ACC+32+2*p+1}")
        A(f"v_bfe_u32 v{V_T+10}, v{V_LANE}, 4, 1")
        A(f"v_lshlrev_b32 v{V_T+10}, 10, v{V_T+10}")
        A(f"v_lshlrev_b32 v{V_T+11}, 8, v{V_T+7}")
        A(f"v_add_u32 v{V_T+10}, v{V_T+10}, v{V_T+11}")
        A(f"v_and_b32 v{V_T+11}, 15, v{V_LANE}")
        A(f"v_lshlrev_b32 v{V_T+11}, 4, v{V_T+11}")
        A(f"v_add_u32 v{V_T+10}, v{V_T+10}, v{V_T+11}")
        A("s_lshl_b32 s41, s27, 9")
        A("s_add_u32 s41, s41, s40")
        A(f"s_add_u32 s41, s41, {VF_OFF}")
        A(f"buffer_store_dwordx4 {vr(E+8,4)}, v{V_T+10}, s[{SRD_WS}:{SRD_WS+3}], s41 offen")
    else:
        CS2 = XF + 16
        A("s_lshl_b32 s39, s27, 6")
        A(f"v_add_u32 v{V_T+9}, s39, v{V_T+8}")
        for jj in range(2):
            A(f"ds_read_b128 {vr(CS2+4*jj,4)}, v{V_T+9} offset:{PRV+384 + jj*32}")
        B1 = XF + 24
        A(f"v_lshlrev_b32 v{V_T+10}, 3, v{V_T+7}")
        A("s_mul_i32 s40, s25, 192")
        A("s_lshl_b32 s41, s27, 6")
        A("s_add_u32 s41, s41, s40")
        for j in range(4):
            A(f"buffer_load_dwordx2 {vr(B1+2*j,2)}, v{V_T+10}, s[{SRD_O}:{SRD_O+3}], s41 offen offset:{16*j}")
        A("s_lshl_b32 s41, s27, 5")
        A("s_add_u32 s41, s41, s40")
        A("s_add_u32 s41, s41, 128")
        for j in range(2):
            A(f"buffer_load_dwordx2 {vr(B1+8+2*j,2)}, v{V_T+10}, s[{SRD_O}:{SRD_O+3}], s41 offen offset:{16*j}")
        A("s_waitcnt vmcnt(0) lgkmcnt(0)")
        BU = XF + 40
        for p in range(12):
            A(f"v_lshlrev_b32 v{BU+2*p}, 16, v{B1+p}")
            A(f"v_and_b32 v{BU+2*p+1}, 0xffff0000, v{B1+p}")
        vals = [(ACC+r, CSR+r, BU+r) for r in range(16)] + [(ACC+32+r, CS2+r, BU+16+r) for r in range(8)]
        C1 = -2.0 * LOG2E * 0.7978845608028654
        C3 = C1 * 0.044715
        A(f"s_mov_b32 s42, {f2u(C1):#x}")
        A(f"s_mov_b32 s43, {f2u(C3):#x}")
        A(f"v_mov_b32 v{V_T+11}, s42")
        T1 = E + 48
        for n, (a, cs, b) in enumerate(vals):
            t1 = T1 + (n % 4) * 2
            A(f"v_fma_f32 v{b}, -v{S0}, v{cs}, v{b}")
            A(f"v_fma_f32 v{a}, v{a}, v{S0+1}, v{b}")
            A(f"v_mul_f32 v{t1}, v{a}, v{a}")
            A(f"v_fma_f32 v{t1}, v{t1}, s43, v{V_T+11}")
            A(f"v_mul_f32 v{t1}, v{t1}, v{a}")
            A(f"v_exp_f32 v{t1}, v{t1}")
            A("s_nop 0")
            A(f"v_add_f32 v{t1}, 1.0, v{t1}")
            A(f"v_rcp_f32 v{t1}, v{t1}")
            A("s_nop 0")
            A(f"v_mul_f32 v{a}, v{a}, v{t1}")
        for p in range(8):
            A(f"v_cvt_pk_bf16_f32 v{E+p}, v{ACC+2*p}, v{ACC+2*p+1}")
        for p in range(4):
            A(f"v_cvt_pk_bf16_f32 v{E+8+p}, v{ACC+32+2*p}, v{ACC+32+2*p+1}")
        A("s_mul_i32 s40, s28, 86")
        A("s_mul_i32 s41, s25, 6")
        A("s_add_u32 s40, s40, s41")
        A("s_lshl_b32 s41, s27, 1")
        A("s_add_u32 s41, s41, s40")
        A("s_lshl_b32 s41, s41, 10")
        A(f"s_add_u32 s41, s41, {H1_OFF}")
        lab_skip = A.label("skip")
        A("s_cmp_eq_u32 s25, 14")
        A("s_cselect_b32 s42, 1, 0")
        A("s_and_b32 s43, s42, s27")
        A("s_cmp_eq_u32 s43, 1")
        lab2 = A.label("skip2")
        A(f"s_cbranch_scc1 {lab2}")
        A(f"buffer_store_dwordx4 {vr(E,4)}, v{V_T}, s[{SRD_WS}:{SRD_WS+3}], s41 offen")
        A(f"buffer_store_dwordx4 {vr(E+4,4)}, v{V_T}, s[{SRD_WS}:{SRD_WS+3}], s41 offen offset:1024")
        A(f"{lab2}:")
        A("s_cmp_eq_u32 s42, 1")
        A(f"s_cbranch_scc1 {lab_skip}")
        A("s_add_u32 s41, s40, s27")
        A("s_add_u32 s41, s41, 4")
        A("s_lshl_b32 s41, s41, 10")
        A(f"s_add_u32 s41, s41, {H1_OFF}")
        A(f"buffer_store_dwordx4 {vr(E+8,4)}, v{V_T}, s[{SRD_WS}:{SRD_WS+3}], s41 offen")
        A(f"{lab_skip}:")
    A(f"L_end_{mode}:")

def attention(A):
    Q = 4
    KF = 8
    VF = 44
    MK = 116
    MP = 132
    T0, T1, T2 = 140, 156, 172
    NM = 188
    O = 204
    P = 220
    VT = 236
    A(f"s_lshr_b32 s24, s{S_I}, 4")
    A(f"s_lshl_b32 s25, s{S_J}, 1")
    A(f"s_add_u32 s24, s24, s25")
    A(f"s_and_b32 s25, s{S_I}, 15")
    A(f"s_and_b32 s26, s{S_W}, 3")
    A(f"s_lshr_b32 s27, s{S_W}, 2")
    A("s_lshl_b32 s28, s24, 2")
    A("s_add_u32 s28, s28, s26")
    A("s_lshl_b32 s29, s25, 1")
    A("s_add_u32 s29, s29, s27")
    A("s_sub_i32 s30, 8, s28")
    A("s_max_i32 s30, s30, 0")
    A(f"v_lshlrev_b32 v{VT}, 4, v{V_LANE}")
    A("s_lshl_b32 s31, s28, 5")
    A("s_add_u32 s31, s31, s29")
    A("s_lshl_b32 s31, s31, 10")
    if QF_OFF: A(f"s_add_u32 s32, s31, {QF_OFF}")
    else: A("s_mov_b32 s32, s31")
    A(f"buffer_load_dwordx4 {vr(Q,4)}, v{VT}, s[{SRD_WS}:{SRD_WS+3}], s32 offen")
    A(f"v_lshrrev_b32 v{VT+1}, 5, v{V_LANE}")
    A(f"v_lshlrev_b32 v{VT+1}, 8, v{VT+1}")
    A(f"v_and_b32 v{VT+2}, 15, v{V_LANE}")
    A(f"v_lshlrev_b32 v{VT+2}, 4, v{VT+2}")
    A(f"v_add_u32 v{VT+1}, v{VT+1}, v{VT+2}")
    for r in range(72):
        A(f"v_mov_b32 v{VF+r}, 0x3f803f80")
    for u in range(9):
        A(f"s_add_i32 s33, s28, {u-8}")
        A("s_max_i32 s33, s33, 0")
        A("s_lshl_b32 s33, s33, 5")
        A("s_add_u32 s33, s33, s29")
        A("s_lshl_b32 s33, s33, 10")
        A(f"s_add_u32 s34, s33, {KF_OFF}")
        A(f"buffer_load_dwordx4 {vr(KF+4*u,4)}, v{VT}, s[{SRD_WS}:{SRD_WS+3}], s34 offen")
    A("s_mov_b32 s36, 0x0000ffff")
    A("s_mov_b32 s37, 0x0000ffff")
    A("s_mov_b64 exec, s[36:37]")
    for u in range(9):
        A(f"s_add_i32 s33, s28, {u-8}")
        A("s_max_i32 s33, s33, 0")
        A("s_lshl_b32 s33, s33, 5")
        A("s_add_u32 s33, s33, s29")
        A("s_lshl_b32 s33, s33, 10")
        A(f"s_add_u32 s34, s33, {VF_OFF}")
        A(f"buffer_load_dwordx4 {vr(VF+8*u,4)}, v{VT+1}, s[{SRD_WS}:{SRD_WS+3}], s34 offen")
        A(f"buffer_load_dwordx4 {vr(VF+8*u+4,4)}, v{VT+1}, s[{SRD_WS}:{SRD_WS+3}], s34 offen offset:512")
    A("s_mov_b64 exec, -1")
    A(f"v_and_b32 v{VT+2}, 31, v{V_LANE}")
    A(f"v_lshrrev_b32 v{VT+3}, 5, v{V_LANE}")
    A(f"v_lshlrev_b32 v{VT+3}, 2, v{VT+3}")
    A(f"v_sub_u32 v{VT+2}, v{VT+2}, v{VT+3}")
    for r in range(16):
        c = 8*(r//4) + r%4
        A(f"v_subrev_u32 v{MK+r}, {c}, v{VT+2}")
        A(f"v_ashrrev_i32 v{MK+r}, 31, v{MK+r}")
        A(f"v_not_b32 v{MK+r}, v{MK+r}")
    A("s_mov_b32 s38, 0xffff")
    A(f"v_mov_b32 v{VT+4}, s38")
    for p in range(8):
        A(f"v_bfi_b32 v{MP+p}, v{VT+4}, v{MK+2*p}, v{MK+2*p+1}")
    NEG = f2u(-1e30)

    def qk(dst, u, c):
        A(f"v_mfma_f32_32x32x16_bf16 {vr(dst,16)}, {vr(KF+4*u,4)}, {vr(Q,4)}, {c}")

    A("s_waitcnt vmcnt(18)")
    M0, M1 = VT+5, VT+6
    qk(T1, 8, "0")
    l0 = A.label("t0inv"); l1 = A.label("t0done")
    A("s_cmp_lg_u32 s30, 0")
    A(f"s_cbranch_scc1 {l0}")
    qk(T0, 0, "0")
    A(f"s_branch {l1}")
    A(f"{l0}:")
    for r in range(16):
        A(f"v_mov_b32 v{T0+r}, {NEG:#x}")
    A(f"{l1}:")
    A("s_nop 15")
    for r in range(16):
        A(f"v_bfi_b32 v{T0+r}, v{MK+r}, v{T1+r}, v{T0+r}")
    A(f"v_max_f32 v{M0}, v{T0}, v{T0+1}")
    A(f"v_max_f32 v{M1}, v{T0+2}, v{T0+3}")
    for r in range(4, 16, 4):
        A(f"v_max3_f32 v{M0}, v{T0+r}, v{T0+r+1}, v{M0}")
        A(f"v_max3_f32 v{M1}, v{T0+r+2}, v{T0+r+3}, v{M1}")
    for u in range(1, 8):
        ls = A.label("skip1")
        A(f"s_cmp_gt_u32 s30, {u}")
        A(f"s_cbranch_scc1 {ls}")
        T = T1 if u % 2 else T2
        qk(T, u, "0")
        A("s_nop 15")
        for r in range(0, 16, 4):
            A(f"v_max3_f32 v{M0}, v{T+r}, v{T+r+1}, v{M0}")
            A(f"v_max3_f32 v{M1}, v{T+r+2}, v{T+r+3}, v{M1}")
        A(f"{ls}:")
    A(f"v_max_f32 v{M0}, v{M0}, v{M1}")
    A(f"v_mov_b32 v{M1}, v{M0}")
    A("s_nop 1")
    A(f"v_permlane32_swap_b32 v{M0}, v{M1}")
    A("s_nop 1")
    A(f"v_max_f32 v{M0}, v{M0}, v{M1}")
    for r in range(16):
        A(f"v_sub_f32 v{NM+r}, 0, v{M0}")
    for r in range(16):
        A(f"v_mov_b32 v{O+r}, 0")
    A("s_waitcnt vmcnt(0)")
    def pv(u, pk):
        A(f"v_mfma_f32_32x32x16_bf16 {vr(O,16)}, {vr(VF+8*u,4)}, {vr(pk,4)}, {vr(O,16)}")
        A(f"v_mfma_f32_32x32x16_bf16 {vr(O,16)}, {vr(VF+8*u+4,4)}, {vr(pk+4,4)}, {vr(O,16)}")
    def exp_pack(T, pk):
        for r in range(16):
            A(f"v_exp_f32 v{T+r}, v{T+r}")
        A("s_nop 0")
        for p in range(8):
            A(f"v_cvt_pk_bf16_f32 v{pk+p}, v{T+2*p}, v{T+2*p+1}")
    A("s_nop 1")
    qk(T1, 8, vr(NM,16))
    l0 = A.label("t0inv"); l1 = A.label("t0done")
    A("s_cmp_lg_u32 s30, 0")
    A(f"s_cbranch_scc1 {l0}")
    qk(T0, 0, vr(NM,16))
    A(f"s_branch {l1}")
    A(f"{l0}:")
    for r in range(16):
        A(f"v_mov_b32 v{T0+r}, {NEG:#x}")
    A(f"{l1}:")
    A("s_nop 15")
    for r in range(16):
        A(f"v_bfi_b32 v{T0+r}, v{MK+r}, v{T1+r}, v{T0+r}")
    exp_pack(T0, P)
    for p in range(8):
        A(f"v_and_b32 v{P+8+p}, v{P+p}, v{MP+p}")
        A(f"v_xor_b32 v{P+p}, v{P+p}, v{P+8+p}")
    A("s_nop 1")
    pv(8, P+8)
    lz = A.label("nov0")
    A("s_cmp_lg_u32 s30, 0")
    A(f"s_cbranch_scc1 {lz}")
    pv(0, P)
    A(f"{lz}:")
    for u in range(1, 8):
        ls = A.label("skip2")
        A(f"s_cmp_gt_u32 s30, {u}")
        A(f"s_cbranch_scc1 {ls}")
        T = T1 if u % 2 else T2
        pk = P + 8*(u % 2)
        qk(T, u, vr(NM,16))
        A("s_nop 15")
        exp_pack(T, pk)
        A("s_nop 1")
        pv(u, pk)
        A(f"{ls}:")
    A("s_nop 15")
    A(f"v_rcp_f32 v{VT+7}, v{O+8}")
    A("s_nop 0")
    for r in range(8):
        A(f"v_mul_f32 v{O+r}, v{O+r}, v{VT+7}")
    for p in range(4):
        A(f"v_cvt_pk_bf16_f32 v{P+p}, v{O+2*p}, v{O+2*p+1}")
    A(f"s_add_u32 s32, s31, {OF_OFF}")
    A(f"buffer_store_dwordx4 {vr(P,4)}, v{VT}, s[{SRD_WS}:{SRD_WS+3}], s32 offen")

def gemm2(A, mode):
    op = (mode == "oproj")
    NKS = 32 if op else 86
    if op:
        qstart = [0, 8, 16, 24]; qlen = [8, 8, 8, 8]; SLOTS = 8
    else:
        qstart = [0, 22, 44, 65]; qlen = [22, 22, 21, 21]; SLOTS = 20
    MAXL = max(qlen)
    XF = 64
    ACC = 160
    WF = 192
    V_WA = 2
    V_T = 4
    E = 208
    QB = SLOTS * 2048
    A(f"s_lshr_b32 s24, s{S_I}, 3")
    A(f"s_lshl_b32 s25, s{S_J}, 2")
    A(f"s_add_u32 s24, s24, s25")
    A(f"s_and_b32 s25, s{S_I}, 7")
    A(f"s_and_b32 s26, s{S_W}, 1")
    A(f"s_lshr_b32 s27, s{S_W}, 1")
    A("s_lshl_b32 s28, s24, 1")
    A("s_add_u32 s28, s28, s26")
    if op:
        srd(A, SRD_WT, P_WO, 512*512*2)
        srd(A, SRD_X, P_X, 2048*512*2)
        A("s_lshl_b32 s29, s27, 3")
    else:
        srd(A, SRD_WT, P_W2, 1376*512*2)
        srd(A, SRD_X, P_B2, 512*2)
        srd(A, SRD_O, P_OUT, 2048*512*2)
        A("s_mul_i32 s29, s27, 22")
        A("s_cmp_eq_u32 s27, 3")
        A("s_cselect_b32 s30, 1, 0")
        A("s_sub_u32 s29, s29, s30")
    WROW = 1024
    A(f"v_lshrrev_b32 v{V_T+2}, 2, v{V_LANE}")
    A(f"v_lshlrev_b32 v{V_T+2}, 10, v{V_T+2}")
    A(f"v_and_b32 v{V_T+3}, 3, v{V_LANE}")
    A(f"v_lshlrev_b32 v{V_T+3}, 4, v{V_T+3}")
    A(f"v_add_u32 v{V_T+2}, v{V_T+2}, v{V_T+3}")
    A("s_lshl_b32 s31, s29, 14")
    A("s_lshl_b32 s32, s25, 7")
    A("s_add_u32 s31, s31, s32")
    A("s_lshl_b32 s32, s26, 6")
    A("s_add_u32 s31, s31, s32")
    A(f"s_mul_i32 s32, s27, {QB}")
    A("s_lshl_b32 s33, s26, 10")
    A("s_add_u32 s32, s32, s33")
    def wdma(slot, ksrel):
        A(f"s_add_u32 m0, s32, {slot*2048}")
        A(f"s_add_u32 s33, s31, {ksrel*16384}")
        A(f"buffer_load_dwordx4 v{V_T+2}, s[{SRD_WT}:{SRD_WT+3}], s33 offen lds")
    nfirst = min(SLOTS, MAXL)
    for s in range(nfirst):
        wdma(s, s)
    A(f"v_lshlrev_b32 v{V_T}, 4, v{V_LANE}")
    A(f"s_mul_i32 s34, s28, {NKS}")
    A("s_add_u32 s34, s34, s29")
    A("s_lshl_b32 s34, s34, 10")
    A(f"s_add_u32 s34, s34, {OF_OFF if op else H1_OFF}")
    for s in range(MAXL):
        A(f"buffer_load_dwordx4 {vr(XF+4*s,4)}, v{V_T}, s[{SRD_WS}:{SRD_WS+3}], s34 offen offset:{(s%4)*1024}")
        if s % 4 == 3:
            A("s_add_u32 s34, s34, 4096")
    A(f"v_lshrrev_b32 v{V_T+7}, 5, v{V_LANE}")
    A(f"v_and_b32 v{V_T+8}, 31, v{V_LANE}")
    RES = E + 24
    BB = E + 28
    if op:
        A(f"v_lshlrev_b32 v{V_T+9}, 10, v{V_T+8}")
        A(f"v_lshlrev_b32 v{V_T+10}, 3, v{V_T+7}")
        A(f"v_add_u32 v{V_T+9}, v{V_T+9}, v{V_T+10}")
        A("s_lshl_b32 s35, s28, 15")
        A("s_lshl_b32 s36, s25, 7")
        A("s_add_u32 s35, s35, s36")
        A("s_lshl_b32 s36, s27, 5")
        A("s_add_u32 s35, s35, s36")
        A(f"buffer_load_dwordx2 {vr(RES,2)}, v{V_T+9}, s[{SRD_X}:{SRD_X+3}], s35 offen")
        A(f"buffer_load_dwordx2 {vr(RES+2,2)}, v{V_T+9}, s[{SRD_X}:{SRD_X+3}], s35 offen offset:16")
        nextra = 2
    else:
        A("s_lshl_b32 s35, s28, 5")
        A("s_lshl_b32 s36, s25, 2")
        A("s_add_u32 s35, s35, s36")
        A("s_add_u32 s35, s35, s27")
        A("s_lshl_b32 s35, s35, 10")
        A(f"s_add_u32 s35, s35, {HF_OFF}")
        A(f"buffer_load_dwordx4 {vr(RES,4)}, v{V_T}, s[{SRD_WS}:{SRD_WS+3}], s35 offen")
        A(f"v_lshlrev_b32 v{V_T+10}, 3, v{V_T+7}")
        A("s_lshl_b32 s35, s25, 7")
        A("s_lshl_b32 s36, s27, 5")
        A("s_add_u32 s35, s35, s36")
        A(f"buffer_load_dwordx2 {vr(BB,2)}, v{V_T+10}, s[{SRD_X}:{SRD_X+3}], s35 offen")
        A(f"buffer_load_dwordx2 {vr(BB+2,2)}, v{V_T+10}, s[{SRD_X}:{SRD_X+3}], s35 offen offset:16")
        nextra = 3
    A(f"v_lshlrev_b32 v{V_T+4}, 8, v{V_T+7}")
    A(f"v_bfe_u32 v{V_T+5}, v{V_LANE}, 2, 2")
    A(f"v_lshlrev_b32 v{V_T+5}, 6, v{V_T+5}")
    A(f"v_add_u32 v{V_T+4}, v{V_T+4}, v{V_T+5}")
    A(f"v_bfe_u32 v{V_T+5}, v{V_LANE}, 4, 1")
    A(f"v_lshlrev_b32 v{V_T+5}, 5, v{V_T+5}")
    A(f"v_add_u32 v{V_T+4}, v{V_T+4}, v{V_T+5}")
    A(f"v_and_b32 v{V_T+5}, 3, v{V_LANE}")
    A(f"v_lshlrev_b32 v{V_T+5}, 3, v{V_T+5}")
    A(f"v_add_u32 v{V_T+4}, v{V_T+4}, v{V_T+5}")
    A(f"s_mul_i32 s36, s27, {QB}")
    A(f"v_add_u32 v{V_WA}, s36, v{V_T+4}")
    for r in range(32):
        A(f"v_mov_b32 v{ACC+r}, 0")
    def wread(setidx, slot):
        for t in range(2):
            base = WF + 8*setidx + 4*t
            off = slot*2048 + t*1024
            A(f"ds_read_b64_tr_b16 {vr(base,2)}, v{V_WA} offset:{off}")
            A(f"ds_read_b64_tr_b16 {vr(base+2,2)}, v{V_WA} offset:{off+512}")
    A(f"s_waitcnt vmcnt({MAXL + nextra})")
    A("s_barrier")
    wread(0, 0)
    extra259 = MAXL - SLOTS if MAXL > SLOTS else 0
    for s in range(MAXL):
        cur = s % 2
        last = (s == MAXL - 1)
        guard = (not op) and s == MAXL - 1
        if extra259 and s == extra259:
            A("s_waitcnt lgkmcnt(0)")
            A("s_barrier")
            for e in range(extra259):
                wdma(e, SLOTS + e)
        if extra259 and s == SLOTS - 1:
            A("s_waitcnt vmcnt(0)")
            A("s_barrier")
        if not last:
            nslot = (s+1) % SLOTS
            wread(1-cur, nslot)
        if s < MAXL:
            rem = MAXL - 1 - s + nextra + (extra259 if (extra259 and s >= extra259 and s < SLOTS-1) else 0)
            if not (extra259 and s >= SLOTS - 1):
                A(f"s_waitcnt vmcnt({min(rem,63)}) lgkmcnt({0 if last else 4})")
            else:
                A(f"s_waitcnt lgkmcnt({0 if last else 4})")
        lg = None
        if guard:
            lg = A.label("g")
            A("s_cmp_ge_u32 s27, 2")
            A(f"s_cbranch_scc1 {lg}")
        for t in range(2):
            A(f"v_mfma_f32_32x32x16_bf16 {vr(ACC+16*t,16)}, {vr(WF+8*cur+4*t,4)}, {vr(XF+4*s,4)}, {vr(ACC+16*t,16)}")
        if guard:
            A(f"{lg}:")
    A("s_nop 15")
    A("s_barrier")
    A("s_lshl_b32 s36, s26, 15")
    A("s_lshl_b32 s37, s27, 11")
    A("s_add_u32 s36, s36, s37")
    A(f"v_add_u32 v{V_T+1}, s36, v{V_T}")
    for d in range(4):
        A(f"ds_write_b128 v{V_T+1}, {vr(ACC+8*d,4)} offset:{d*8192}")
        A(f"ds_write_b128 v{V_T+1}, {vr(ACC+8*d+4,4)} offset:{d*8192+1024}")
    A("s_waitcnt lgkmcnt(0)")
    A("s_barrier")
    A("s_lshl_b32 s36, s26, 15")
    A("s_lshl_b32 s37, s27, 13")
    A("s_add_u32 s36, s36, s37")
    A(f"v_add_u32 v{V_T+1}, s36, v{V_T}")
    for sq in range(4):
        A(f"ds_read_b128 {vr(XF+8*sq,4)}, v{V_T+1} offset:{sq*2048}")
        A(f"ds_read_b128 {vr(XF+8*sq+4,4)}, v{V_T+1} offset:{sq*2048+1024}")
    A("s_waitcnt vmcnt(0) lgkmcnt(0)")
    for r in range(8):
        A(f"v_add_f32 v{XF+r}, v{XF+r}, v{XF+8+r}")
        A(f"v_add_f32 v{XF+16+r}, v{XF+16+r}, v{XF+24+r}")
        A(f"v_add_f32 v{XF+r}, v{XF+r}, v{XF+16+r}")
    for p in range(4):
        A(f"v_lshlrev_b32 v{E+2*p}, 16, v{RES+p}")
        A(f"v_and_b32 v{E+2*p+1}, 0xffff0000, v{RES+p}")
    if op:
        for r in range(8):
            A(f"v_add_f32 v{XF+r}, v{XF+r}, v{E+r}")
        for p in range(4):
            A(f"v_cvt_pk_bf16_f32 v{E+8+p}, v{XF+2*p}, v{XF+2*p+1}")
        A("s_lshl_b32 s35, s28, 5")
        A("s_lshl_b32 s36, s25, 2")
        A("s_add_u32 s35, s35, s36")
        A("s_add_u32 s35, s35, s27")
        A("s_lshl_b32 s35, s35, 10")
        A(f"s_add_u32 s35, s35, {HF_OFF}")
        A(f"buffer_store_dwordx4 {vr(E+8,4)}, v{V_T}, s[{SRD_WS}:{SRD_WS+3}], s35 offen")
    else:
        for p in range(4):
            A(f"v_lshlrev_b32 v{E+8+2*p}, 16, v{BB+p}")
            A(f"v_and_b32 v{E+8+2*p+1}, 0xffff0000, v{BB+p}")
        for r in range(8):
            A(f"v_add_f32 v{XF+r}, v{XF+r}, v{E+8+r}")
            A(f"v_add_f32 v{XF+r}, v{XF+r}, v{E+r}")
        for p in range(4):
            A(f"v_cvt_pk_bf16_f32 v{E+16+p}, v{XF+2*p}, v{XF+2*p+1}")
        A("s_nop 1")
        A(f"v_permlane32_swap_b32 v{E+16}, v{E+18}")
        A(f"v_permlane32_swap_b32 v{E+17}, v{E+19}")
        A(f"v_lshlrev_b32 v{V_T+9}, 10, v{V_T+8}")
        A(f"v_lshlrev_b32 v{V_T+10}, 4, v{V_T+7}")
        A(f"v_add_u32 v{V_T+9}, v{V_T+9}, v{V_T+10}")
        A("s_lshl_b32 s35, s28, 15")
        A("s_lshl_b32 s36, s25, 7")
        A("s_add_u32 s35, s35, s36")
        A("s_lshl_b32 s36, s27, 5")
        A("s_add_u32 s35, s35, s36")
        A("s_nop 0")
        A(f"buffer_store_dwordx4 {vr(E+16,4)}, v{V_T+9}, s[{SRD_O}:{SRD_O+3}], s35 offen")

HEADER = """; Kernarg layout (88 bytes): A_x, A_wqkv, A_wo, B_x, B_w1, B_b1, B_w2, B_b2, d_out, d_debug, d_ws
"""

def build_multi():
    A = Asm()
    ks = [("p1_kernel", 163840), ("p2_kernel", 0), ("p3_kernel", 65536), ("p4_kernel", 98304), ("p5_kernel", 163840)]
    hdr = HEADER + "".join(f"; @launch kernel={k} grid=(256,1,1) block=(512,1,1) lds={l}\n" for k, l in ks)
    A('.amdgcn_target "amdgcn-amd-amdhsa--gfx950"')
    A(".text")
    prologue(A, "p1_kernel"); gemm3(A, "qkv"); epilogue_end(A, "p1_kernel")
    prologue(A, "p2_kernel"); attention(A); epilogue_end(A, "p2_kernel")
    prologue(A, "p3_kernel"); gemm2(A, "oproj"); epilogue_end(A, "p3_kernel")
    prologue(A, "p4_kernel"); gemm3(A, "ffn1"); epilogue_end(A, "p4_kernel")
    prologue(A, "p5_kernel"); gemm2(A, "ffn2"); epilogue_end(A, "p5_kernel")
    A('.section .rodata,"a"')
    for k, l in ks:
        kd(A, k)
    return hdr + A.text()

if __name__ == "__main__":
    out = sys.argv[1] if len(sys.argv) > 1 else f"cdna_kernels/{NAME}.s"
    open(out, "w").write(build_multi())
    print("wrote", out)
```

```python
import sys, struct
NAME = "sequential_preLN__sliding_block__dense_activation_gelu__prompt"
MB = 1 << 20
QF_OFF = 0 * MB
KF_OFF = 2 * MB
VF_OFF = 4 * MB
OF_OFF = 6 * MB
HF_OFF = 8 * MB
H1_OFF = 10 * MB
FLAG_OFF = 16 * MB
F1, F2, F3, F4, EPOCH = FLAG_OFF, FLAG_OFF + 4096, FLAG_OFF + 8192, FLAG_OFF + 12288, FLAG_OFF + 16384
WS_BYTES = 256 * MB
LOG2E = 1.4426950408889634
QSCALE = 0.25 * LOG2E
POLL_LIMIT = 400000
def f2u(x): return struct.unpack("<I", struct.pack("<f", x))[0]

class Asm:
    def __init__(self):
        self.L = []; self.uid = 0
    def __call__(self, s):
        for line in s.strip("\n").split("\n"):
            self.L.append(line.strip())
    def label(self, base):
        self.uid += 1
        return f"L_{base}_{self.uid}"
    def text(self): return "\n".join(self.L) + "\n"
def vr(b, n): return f"v[{b}:{b+n-1}]" if n > 1 else f"v{b}"
def sr(b, n): return f"s[{b}:{b+n-1}]"

S_RB64, S_C8, S_W = 3, 4, 5
SRD_WS, SRD_WT, SRD_X, SRD_O = 8, 12, 16, 20
S_TAG, S_CNT, S_FOFF = 60, 61, 62
P_X, P_WQKV, P_WO, P_BX, P_W1, P_B1, P_W2, P_B2, P_OUT, P_DBG, P_WS = [64 + 2*i for i in range(11)]
V_LANE = 1
HRES, V_DUMMY, V_POFF, V_POLL, V_STAMP = 248, 252, 253, 254, 255
WS = sr(SRD_WS, 4); WT = sr(SRD_WT, 4); XS = sr(SRD_X, 4); OS = sr(SRD_O, 4)
SC1 = " sc1"

def srd(A, s, ptr, nbytes):
    A(f"s_mov_b32 s{s}, s{ptr}\ns_mov_b32 s{s+1}, s{ptr+1}\ns_mov_b32 s{s+2}, {nbytes}\ns_mov_b32 s{s+3}, 0x20000")

STAMPS = False
STAMP_OFF = 32 * MB
TOUCH3 = True
CODEWARM = True
CODE_SPAN = 0x1000
def stamp(A, idx):
    if STAMPS:
        A("s_memrealtime s[86:87]\ns_waitcnt lgkmcnt(0)")
        A(f"v_writelane_b32 v{V_STAMP}, s86, {idx}")

def flag_store(A, setup):
    l = A.label("nf")
    A(f"s_cmp_lg_u32 s{S_W}, 0\ns_cbranch_scc1 {l}")
    setup()
    A(f"s_mov_b64 exec, 1\nv_mov_b32 v{V_POLL}, s{S_TAG}")
    A(f"buffer_store_dword v{V_POLL}, off, {WS}, s{S_FOFF} sc1")
    A("s_mov_b64 exec, -1")
    A(f"{l}:")

def poll(A, setup, pre_other=None, post_poll=None):
    lo = A.label("po"); lj = A.label("pj"); lp = A.label("pl"); ld = A.label("pd")
    A(f"s_cmp_lg_u32 s{S_W}, 0\ns_cbranch_scc1 {lo}")
    setup()
    A(f"s_cmp_eq_u64 s[6:7], 0\ns_cbranch_scc1 {ld}")
    A("s_mov_b64 exec, s[6:7]")
    A(f"s_mov_b32 s{S_CNT}, {POLL_LIMIT}")
    A(f"{lp}:")
    A(f"buffer_load_dword v{V_POLL}, v{V_POFF}, {WS}, s{S_FOFF} offen sc1")
    A("s_waitcnt vmcnt(0)")
    A(f"v_cmp_ne_u32 vcc, s{S_TAG}, v{V_POLL}")
    A(f"s_cbranch_vccz {ld}")
    A(f"s_sub_u32 s{S_CNT}, s{S_CNT}, 1")
    A(f"s_cbranch_scc0 {lp}")
    A(f"{ld}:")
    A("s_mov_b64 exec, -1")
    if post_poll: post_poll()
    if pre_other:
        A(f"s_branch {lj}")
        A(f"{lo}:")
        pre_other()
        A(f"{lj}:")
    else:
        A(f"{lo}:")
    A("s_barrier")

def wd_voff(A, dst, tmp, rowstride):
    A(f"v_lshrrev_b32 v{dst}, 3, v{V_LANE}")
    A(f"v_mul_u32_u24 v{dst}, {rowstride}, v{dst}")
    A(f"v_bfe_u32 v{tmp}, v{V_LANE}, 4, 1")
    A(f"v_lshlrev_b32 v{tmp}, 2, v{tmp}")
    A(f"v_xor_b32 v{tmp}, v{tmp}, v{V_LANE}")
    A(f"v_and_b32 v{tmp}, 7, v{tmp}")
    A(f"v_lshlrev_b32 v{tmp}, 4, v{tmp}")
    A(f"v_add_u32 v{dst}, v{dst}, v{tmp}")

XF, ACC, WF, E = 64, 128, 176, 200
QREG = 244
EX, ST, CSP, PRV = 0, 49152, 53248, 59392

def p1(A):
    V_WA = 2
    V_T = 5
    V_SUM, V_SQ, V_CS = 16, 17, 18
    V_WD = 21
    V_XA = 24
    V_DM = 32
    XREG = 98304
    WROW = 3072
    srd(A, SRD_WT, P_WQKV, 512*1536*2)
    srd(A, SRD_X, P_X, 2048*512*2)
    A(f"s_and_b32 s26, s{S_W}, 1")
    A(f"s_bfe_u32 s28, s{S_W}, 0x10001")
    A(f"s_lshr_b32 s27, s{S_W}, 2")
    A(f"v_lshrrev_b32 v{V_T}, 4, v{V_LANE}")
    A(f"v_and_b32 v{V_T+1}, 15, v{V_LANE}")
    A(f"v_xor_b32 v{V_T+1}, v{V_T+1}, v{V_T}")
    A(f"v_lshlrev_b32 v{V_T+1}, 4, v{V_T+1}")
    A(f"v_lshlrev_b32 v{V_T}, 10, v{V_T}")
    A(f"v_add_u32 v{V_DM}, v{V_T}, v{V_T+1}")
    for m in range(1, 4):
        A(f"v_xor_b32 v{V_DM+m}, {64*m}, v{V_DM}")
    A(f"s_lshr_b32 s29, s{S_W}, 1")
    A(f"s_lshl_b32 s30, s{S_RB64}, 6")
    A("s_lshl_b32 s31, s26, 5")
    A("s_add_u32 s30, s30, s31")
    A("s_lshl_b32 s30, s30, 10")
    A("s_lshl_b32 s32, s29, 8")
    A("s_add_u32 s30, s30, s32")
    A("s_lshl_b32 s32, s29, 14")
    A("s_lshl_b32 s31, s31, 8")
    A("s_add_u32 s32, s32, s31")
    A(f"s_add_u32 s32, s32, {XREG}")
    for m in range(8):
        A(f"s_add_u32 m0, s32, {m*1024}")
        A(f"s_add_u32 s31, s30, {m*4096}")
        A(f"buffer_load_dwordx4 v{V_DM + m%4}, {XS}, s31 offen lds")
    wd_voff(A, V_WD, V_T, WROW)
    A(f"s_mul_i32 s33, s{S_W}, {16*WROW}")
    A(f"s_lshl_b32 s34, s{S_C8}, 7")
    A("s_add_u32 s33, s33, s34")
    A(f"s_mul_i32 s35, s{S_W}, 12288")
    for kh in range(2):
        for t in range(3):
            for h in range(2):
                A(f"s_add_u32 m0, s35, {kh*6144 + t*2048 + h*1024}")
                A(f"s_add_u32 s31, s33, {(256*kh + 8*h)*WROW + t*1024}")
                A(f"buffer_load_dwordx4 v{V_WD}, {WT}, s31 offen lds")
    NT = 0
    if TOUCH3:
        A(f"s_and_b32 s36, s{S_RB64}, 3")
        A("s_mul_i32 s36, s36, 96")
        A(f"s_mul_i32 s37, s{S_W}, 12")
        A("s_add_u32 s36, s36, s37")
        A(f"v_add_u32 v{V_T}, s36, v{V_LANE}")
        A(f"v_lshrrev_b32 v{V_T+1}, 7, v{V_T}")
        A(f"v_lshlrev_b32 v{V_T+1}, 10, v{V_T+1}")
        A(f"v_bfe_u32 v{V_T+2}, v{V_T}, 6, 1")
        A(f"v_lshlrev_b32 v{V_T+2}, 8, v{V_T+2}")
        A(f"v_and_b32 v{V_T}, 63, v{V_T}")
        A(f"v_add_u32 v{V_T}, v{V_T}, v{V_T+2}")
        A(f"v_add_u32 v{V_T}, 192, v{V_T}")
        A(f"v_mul_u32_u24 v{V_T}, {WROW}, v{V_T}")
        A(f"v_add_u32 v{V_T}, v{V_T}, v{V_T+1}")
        A("s_mov_b64 exec, 0xfff")
        A(f"buffer_load_dword v{V_DUMMY}, v{V_T}, {WT}, s34 offen")
        A("s_mov_b64 exec, -1")
        NT += 1
    if CODEWARM:
        A("s_getpc_b64 s[38:39]")
        A("L_pcref:")
        A("s_and_b32 s38, s38, 0xffffff00")
        A(f"s_lshl_b32 s36, s{S_W}, 12")
        A(f"v_lshlrev_b32 v{V_T}, 7, v{V_LANE}")
        A(f"v_add_u32 v{V_T}, s36, v{V_T}")
        A(f"v_min_u32 v{V_T}, {CODE_SPAN:#x}, v{V_T}")
        A("s_mov_b64 exec, 0xffffffff")
        A(f"global_load_dword v{V_DUMMY}, v{V_T}, s[38:39]")
        A("s_mov_b64 exec, -1")
        NT += 1
    A(f"s_lshr_b32 s36, s{S_W}, 1")
    A("s_lshl_b32 s37, s36, 4")
    A("s_lshl_b32 s38, s26, 8")
    A("s_add_u32 s37, s37, s38")
    A("s_add_u32 s37, s37, 128")
    A(f"s_mul_i32 s37, s37, {WROW}")
    A("s_add_u32 s37, s37, s34")
    A("s_mul_i32 s36, s36, 12288")
    A("s_mul_i32 s38, s26, 6144")
    A("s_add_u32 s36, s36, s38")
    def batch(b):
        for t in range(3):
            for h in range(2):
                A(f"s_add_u32 m0, s36, {(XREG if b == 0 else 0) + t*2048 + h*1024}")
                A(f"s_add_u32 s31, s37, {(64*b + 8*h)*WROW + t*1024}")
                A(f"buffer_load_dwordx4 v{V_WD}, {WT}, s31 offen lds")
    A(f"v_lshrrev_b32 v{V_T}, 5, v{V_LANE}")
    A(f"v_lshlrev_b32 v{V_T}, 10, v{V_T}")
    A(f"v_bfe_u32 v{V_T+1}, v{V_LANE}, 2, 2")
    A(f"v_lshlrev_b32 v{V_T+1}, 7, v{V_T+1}")
    A(f"v_add_u32 v{V_T}, v{V_T}, v{V_T+1}")
    A(f"v_bfe_u32 v{V_T+1}, v{V_LANE}, 3, 1")
    A(f"v_xor_b32 v{V_T+1}, s28, v{V_T+1}")
    A(f"v_lshlrev_b32 v{V_T+1}, 6, v{V_T+1}")
    A(f"v_add_u32 v{V_T}, v{V_T}, v{V_T+1}")
    A(f"v_bfe_u32 v{V_T+1}, v{V_LANE}, 4, 1")
    A(f"v_lshlrev_b32 v{V_T+1}, 5, v{V_T+1}")
    A(f"v_add_u32 v{V_T}, v{V_T}, v{V_T+1}")
    A(f"v_and_b32 v{V_T+1}, 3, v{V_LANE}")
    A(f"v_lshlrev_b32 v{V_T+1}, 3, v{V_T+1}")
    A(f"v_add_u32 v{V_T}, v{V_T}, v{V_T+1}")
    A("s_mul_i32 s38, s27, 6144")
    A(f"v_add_u32 v{V_WA}, s38, v{V_T}")
    A(f"v_add_u32 v{V_WA+1}, 49152, v{V_WA}")
    A(f"v_add_u32 v{V_WA+2}, 98304, v{V_WA}")
    for r in range(48):
        A(f"v_mov_b32 v{ACC+r}, 0")
    for r in [V_SUM, V_SQ, V_CS, V_CS+1, V_CS+2]:
        A(f"v_mov_b32 v{r}, 0")
    A("s_mov_b32 s39, 0x3f803f80")
    A(f"v_and_b32 v{V_T}, 31, v{V_LANE}")
    A(f"v_lshlrev_b32 v{V_T+1}, 8, v{V_T}")
    A(f"v_and_b32 v{V_T}, 15, v{V_T}")
    A(f"v_lshrrev_b32 v{V_T+2}, 5, v{V_LANE}")
    A(f"v_xor_b32 v{V_T}, v{V_T}, v{V_T+2}")
    A(f"v_lshlrev_b32 v{V_T}, 4, v{V_T}")
    A(f"v_add_u32 v{V_T}, v{V_T}, v{V_T+1}")
    A("s_lshl_b32 s38, s27, 15")
    A("s_lshl_b32 s40, s26, 13")
    A("s_add_u32 s38, s38, s40")
    A(f"s_add_u32 s38, s38, {XREG}")
    A(f"v_add_u32 v{V_XA}, s38, v{V_T}")
    for k in range(1, 8):
        A(f"v_xor_b32 v{V_XA+k}, {32*k}, v{V_XA}")

    def wread(setidx, s):
        a, rel = (V_WA, s) if s < 4 else (V_WA+1, s-4) if s < 8 else (V_WA+2, s-8) if s < 12 else (V_WA, s-12)
        for t in range(3):
            base = WF + 12*setidx + 4*t
            off = rel*12288 + t*2048
            A(f"ds_read_b64_tr_b16 {vr(base,2)}, v{a} offset:{off}")
            A(f"ds_read_b64_tr_b16 {vr(base+2,2)}, v{a} offset:{off+512}")
    def chunk(s0):
        wread(0, s0)
        for s in range(s0, s0+4):
            cur = (s - s0) % 2
            if s + 1 < s0 + 4:
                wread(1-cur, s+1)
                A("s_waitcnt lgkmcnt(6)")
            else:
                A("s_waitcnt lgkmcnt(0)")
            x = vr(XF+4*s, 4)
            for t in range(3):
                w = vr(WF+12*cur+4*t, 4); acc = vr(ACC+16*t, 16)
                if t == 2: A(f"v_mfma_f32_32x32x16_bf16 {acc}, {x}, {w}, {acc}")
                else:      A(f"v_mfma_f32_32x32x16_bf16 {acc}, {w}, {x}, {acc}")
            ls = A.label("cs")
            A(f"s_cmp_lg_u32 s26, {s%2}\ns_cbranch_scc1 {ls}")
            for t in range(3):
                for d in range(4):
                    A(f"v_dot2c_f32_bf16 v{V_CS+t}, s39, v{WF+12*cur+4*t+d}")
            A(f"{ls}:")
    A(f"s_waitcnt vmcnt({12+NT})")
    A("s_barrier")
    stamp(A, 1)
    for s in range(16):
        A(f"ds_read_b128 {vr(XF+4*s,4)}, v{V_XA + s%8} offset:{16384*(s//8)}")
    A("s_waitcnt lgkmcnt(0)")
    A(f"s_add_u32 s{S_TAG}, s{S_TAG}, 1")
    A("s_barrier")
    batch(0)
    for s in range(16):
        for d in range(4):
            A(f"v_dot2c_f32_bf16 v{V_SUM}, s39, v{XF+4*s+d}")
            A(f"v_dot2c_f32_bf16 v{V_SQ}, v{XF+4*s+d}, v{XF+4*s+d}")
    A(f"s_waitcnt vmcnt({NT+6})")
    A("s_barrier")
    stamp(A, 2)
    chunk(0)
    A("s_barrier")
    batch(1)
    chunk(4)
    A("s_waitcnt vmcnt(6)")
    A("s_barrier")
    chunk(8)
    A("s_waitcnt vmcnt(0)")
    A("s_barrier")
    chunk(12)
    stamp(A, 3)
    A("s_nop 7")
    A("s_barrier")
    V_L16 = V_T
    A(f"v_lshlrev_b32 v{V_L16}, 4, v{V_LANE}")
    A(f"s_mul_i32 s38, s{S_W}, 6144")
    A(f"v_add_u32 v{V_T+1}, s38, v{V_L16}")
    lk1 = A.label("k1"); lj = A.label("j")
    A("s_nop 7")
    A(f"s_cmp_eq_u32 s27, 1\ns_cbranch_scc1 {lk1}")
    for t in range(3):
        for c in range(2):
            A(f"ds_write_b128 v{V_T+1}, {vr(ACC+16*t+8+4*c,4)} offset:{EX + (2*t+c)*1024}")
    A(f"s_branch {lj}")
    A(f"{lk1}:")
    for t in range(3):
        for c in range(2):
            A(f"ds_write_b128 v{V_T+1}, {vr(ACC+16*t+4*c,4)} offset:{EX + (2*t+c)*1024}")
    A(f"{lj}:")
    A(f"v_lshlrev_b32 v{V_T+2}, 3, v{V_LANE}")
    A(f"s_lshl_b32 s38, s{S_W}, 9")
    A(f"v_add_u32 v{V_T+2}, s38, v{V_T+2}")
    A(f"ds_write_b64 v{V_T+2}, {vr(V_SUM,2)} offset:{ST}")
    A(f"v_lshlrev_b32 v{V_T+3}, 2, v{V_LANE}")
    A(f"s_mul_i32 s38, s{S_W}, 768")
    A(f"v_add_u32 v{V_T+4}, s38, v{V_T+3}")
    for t in range(3):
        A(f"ds_write_b32 v{V_T+4}, v{V_CS+t} offset:{CSP + t*256}")
    A("s_waitcnt lgkmcnt(0)")
    A("s_barrier")
    A(f"s_xor_b32 s38, s{S_W}, 4")
    A("s_mul_i32 s38, s38, 6144")
    A(f"v_add_u32 v{V_T+1}, s38, v{V_L16}")
    S0 = E + 24; C0 = E + 32
    A(f"v_and_b32 v{V_T+2}, 31, v{V_LANE}")
    A(f"v_lshlrev_b32 v{V_T+2}, 3, v{V_T+2}")
    A(f"s_and_b32 s38, s{S_W}, 3")
    A("s_lshl_b32 s38, s38, 9")
    A(f"v_add_u32 v{V_T+2}, s38, v{V_T+2}")
    A(f"ds_read_b64 {vr(S0,2)}, v{V_T+2} offset:{ST}")
    A(f"ds_read_b64 {vr(S0+2,2)}, v{V_T+2} offset:{ST+256}")
    A(f"ds_read_b64 {vr(S0+4,2)}, v{V_T+2} offset:{ST+2048}")
    A(f"ds_read_b64 {vr(S0+6,2)}, v{V_T+2} offset:{ST+2048+256}")
    A("s_mul_i32 s38, s28, 1536")
    A(f"v_add_u32 v{V_T+4}, s38, v{V_T+3}")
    for t in range(3):
        for n, w in enumerate([0, 1, 4, 5]):
            A(f"ds_read_b32 v{C0+4*t+n}, v{V_T+4} offset:{CSP + w*768 + t*256}")
    for c in range(6):
        A(f"ds_read_b128 {vr(E+4*c,4)}, v{V_T+1} offset:{EX + c*1024}")
    A("s_waitcnt lgkmcnt(15)") if False else None
    A("s_waitcnt lgkmcnt(6)")
    A(f"v_add_f32 v{S0}, v{S0}, v{S0+2}")
    A(f"v_add_f32 v{S0+4}, v{S0+4}, v{S0+6}")
    A(f"v_add_f32 v{S0+1}, v{S0+1}, v{S0+3}")
    A(f"v_add_f32 v{S0+5}, v{S0+5}, v{S0+7}")
    A(f"v_add_f32 v{S0}, v{S0}, v{S0+4}")
    A(f"v_add_f32 v{S0+1}, v{S0+1}, v{S0+5}")
    A(f"v_mul_f32 v{S0}, {f2u(1.0/512):#x}, v{S0}")
    A(f"v_mul_f32 v{S0+1}, {f2u(1.0/512):#x}, v{S0+1}")
    A(f"v_fma_f32 v{S0+1}, -v{S0}, v{S0}, v{S0+1}")
    A(f"v_max_f32 v{S0+1}, 0, v{S0+1}")
    A(f"v_add_f32 v{S0+1}, {f2u(1e-5):#x}, v{S0+1}")
    A(f"v_rsq_f32 v{S0+1}, v{S0+1}")
    for t in range(3):
        A(f"v_add_f32 v{C0+4*t}, v{C0+4*t}, v{C0+4*t+1}")
        A(f"v_add_f32 v{C0+4*t+2}, v{C0+4*t+2}, v{C0+4*t+3}")
    A(f"v_mul_f32 v{S0}, v{S0}, v{S0+1}")
    for t in range(3):
        A(f"v_add_f32 v{C0+4*t}, v{C0+4*t}, v{C0+4*t+2}")
    for t in range(3):
        A(f"v_mov_b32 v{C0+4*t+1}, v{C0+4*t}")
    A("s_nop 1")
    for t in range(3):
        A(f"v_permlane32_swap_b32 v{C0+4*t}, v{C0+4*t+1}")
    A("s_nop 1")
    for t in range(3):
        A(f"v_add_f32 v{C0+4*t}, v{C0+4*t}, v{C0+4*t+1}")
    A(f"v_and_b32 v{V_T+5}, 31, v{V_LANE}")
    A(f"s_lshl_b32 s38, s{S_W}, 9")
    A(f"v_lshlrev_b32 v{V_T+6}, 3, v{V_T+5}")
    A(f"v_add_u32 v{V_T+6}, s38, v{V_T+6}")
    A(f"ds_write_b64 v{V_T+6}, {vr(S0,2)} offset:{PRV}")
    A(f"v_lshlrev_b32 v{V_T+6}, 2, v{V_T+5}")
    A(f"v_add_u32 v{V_T+6}, s38, v{V_T+6}")
    A(f"ds_write_b32 v{V_T+6}, v{C0} offset:{PRV+256}")
    A(f"ds_write_b32 v{V_T+6}, v{C0+4} offset:{PRV+384}")
    A(f"v_lshrrev_b32 v{V_T+7}, 5, v{V_LANE}")
    A(f"v_lshlrev_b32 v{V_T+8}, 4, v{V_T+7}")
    A("s_lshl_b32 s40, s27, 6")
    A("s_add_u32 s40, s40, s38")
    A(f"v_add_u32 v{V_T+8}, s40, v{V_T+8}")
    A(f"v_lshlrev_b32 v{V_T+9}, 5, v{V_T+7}")
    A("s_lshl_b32 s40, s27, 7")
    A("s_add_u32 s40, s40, s38")
    A(f"v_add_u32 v{V_T+9}, s40, v{V_T+9}")
    lk1 = A.label("k1"); lj = A.label("j")
    A(f"s_cmp_eq_u32 s27, 1\ns_cbranch_scc1 {lk1}")
    for t in range(3):
        for r in range(8):
            A(f"v_add_f32 v{E+8*t+r}, v{E+8*t+r}, v{ACC+16*t+r}")
    A(f"s_branch {lj}")
    A(f"{lk1}:")
    for t in range(3):
        for r in range(8):
            A(f"v_add_f32 v{E+8*t+r}, v{E+8*t+r}, v{ACC+16*t+8+r}")
    A(f"{lj}:")
    A("s_waitcnt lgkmcnt(0)")
    CSR = XF; RS = XF + 16
    for t in range(2):
        for jj in range(2):
            A(f"ds_read_b128 {vr(CSR+8*t+4*jj,4)}, v{V_T+8} offset:{PRV+256 + t*128 + jj*32}")
    for jj in range(2):
        A(f"ds_read_b128 {vr(RS+8*jj,4)}, v{V_T+9} offset:{PRV + jj*64}")
        A(f"ds_read_b128 {vr(RS+8*jj+4,4)}, v{V_T+9} offset:{PRV + jj*64 + 16}")
    A(f"s_lshl_b32 s40, s{S_RB64}, 1")
    A("s_add_u32 s40, s40, s26")
    A("s_lshl_b32 s40, s40, 5")
    A(f"s_lshl_b32 s41, s{S_C8}, 2")
    A("s_add_u32 s40, s40, s41")
    A("s_lshl_b32 s41, s28, 1")
    A("s_add_u32 s40, s40, s41")
    A("s_add_u32 s41, s40, s27")
    A("s_lshl_b32 s41, s41, 10")
    A(f"s_add_u32 s41, s41, {KF_OFF}")
    A("s_lshl_b32 s40, s40, 10")
    A("s_lshl_b32 s42, s27, 9")
    A("s_add_u32 s40, s40, s42")
    A(f"s_add_u32 s40, s40, {VF_OFF}")
    A(f"v_bfe_u32 v{V_T+10}, v{V_LANE}, 4, 1")
    A(f"v_lshlrev_b32 v{V_T+10}, 10, v{V_T+10}")
    A(f"v_lshlrev_b32 v{V_T+6}, 8, v{V_T+7}")
    A(f"v_add_u32 v{V_T+10}, v{V_T+10}, v{V_T+6}")
    A(f"v_and_b32 v{V_T+6}, 15, v{V_LANE}")
    A(f"v_lshlrev_b32 v{V_T+6}, 4, v{V_T+6}")
    A(f"v_add_u32 v{V_T+10}, v{V_T+10}, v{V_T+6}")
    A(f"v_mul_f32 v{S0+2}, {f2u(QSCALE):#x}, v{S0+1}")
    A(f"v_mul_f32 v{S0+3}, {f2u(QSCALE):#x}, v{S0}")
    A("s_waitcnt lgkmcnt(4)")
    KP, VP = XF + 32, XF + 36
    for r in range(8):
        A(f"v_mul_f32 v{E+8+r}, v{E+8+r}, v{S0+1}")
        A(f"v_fma_f32 v{E+8+r}, -v{S0}, v{CSR+8+r}, v{E+8+r}")
    for p in range(4):
        A(f"v_cvt_pk_bf16_f32 v{KP+p}, v{E+8+2*p}, v{E+8+2*p+1}")
    A(f"buffer_store_dwordx4 {vr(KP,4)}, v{V_L16}, {WS}, s41 offen sc1")
    A("s_waitcnt lgkmcnt(0)")
    for r in range(8):
        A(f"v_mul_f32 v{E+16+r}, v{E+16+r}, v{RS+2*r+1}")
        A(f"v_fma_f32 v{E+16+r}, -v{RS+2*r}, v{C0+8}, v{E+16+r}")
    for p in range(4):
        A(f"v_cvt_pk_bf16_f32 v{VP+p}, v{E+16+2*p}, v{E+16+2*p+1}")
    A(f"buffer_store_dwordx4 {vr(VP,4)}, v{V_T+10}, {WS}, s40 offen sc1")
    for r in range(8):
        A(f"v_mul_f32 v{E+r}, v{E+r}, v{S0+2}")
        A(f"v_fma_f32 v{E+r}, -v{S0+3}, v{CSR+r}, v{E+r}")
    for p in range(4):
        A(f"v_cvt_pk_bf16_f32 v{QREG+p}, v{E+2*p}, v{E+2*p+1}")
    A("s_waitcnt vmcnt(0)")
    A("s_barrier")
    def fs():
        A(f"s_lshl_b32 s{S_FOFF}, s{S_C8}, 7")
        A(f"s_lshl_b32 s6, s{S_RB64}, 2")
        A(f"s_add_u32 s{S_FOFF}, s{S_FOFF}, s6")
        A(f"s_add_u32 s{S_FOFF}, s{S_FOFF}, {F1}")
    flag_store(A, fs)
    stamp(A, 4)

def g2_dma_setup(A, vd, vt, wptr, nbytes, ffn2):
    srd(A, SRD_WT, wptr, nbytes)
    wd_voff(A, vd, vt, 1024)
    A(f"s_lshr_b32 s46, s{S_W}, 1")
    if ffn2:
        A("s_mul_i32 s44, s46, 22")
        A("s_cmp_eq_u32 s46, 3\ns_cselect_b32 s47, 1, 0\ns_sub_u32 s44, s44, s47")
    else:
        A("s_lshl_b32 s44, s46, 3")
    A("s_lshl_b32 s44, s44, 14")
    A(f"s_and_b32 s47, s{S_W}, 1")
    A("s_lshl_b32 s45, s47, 13")
    A("s_add_u32 s44, s44, s45")
    A(f"s_lshl_b32 s45, s{S_C8}, 7")
    A("s_add_u32 s44, s44, s45")
    A("s_lshl_b32 s45, s46, 11")
    A("s_lshl_b32 s47, s47, 10")
    A("s_add_u32 s45, s45, s47")
def g2_dma(A, vd, slot, ksrel):
    A(f"s_add_u32 m0, s45, {slot*8192}")
    A(f"s_add_u32 s47, s44, {ksrel*16384}")
    A(f"buffer_load_dwordx4 v{vd}, {WT}, s47 offen lds")

W1BASE = 65536
def w1_dma(A, v0, vt):
    srd(A, SRD_O, P_W1, 512*1376*2)
    for n in range(3):
        A(f"v_add_u32 v{vt}, {64*n}, v{V_LANE}")
        A(f"v_mul_u32_u24 v{vt+1}, 171, v{vt}")
        A(f"v_lshrrev_b32 v{vt+1}, 11, v{vt+1}")
        A(f"v_mul_u32_u24 v{vt+2}, 12, v{vt+1}")
        A(f"v_sub_u32 v{vt}, v{vt}, v{vt+2}")
        A(f"v_lshlrev_b32 v{vt}, 4, v{vt}")
        A(f"v_mul_u32_u24 v{vt+1}, 2752, v{vt+1}")
        A(f"v_add_u32 v{v0+n}, v{vt}, v{vt+1}")
    A(f"s_and_b32 s48, s{S_RB64}, 1")
    A("s_lshl_b32 s48, s48, 3")
    A(f"s_add_u32 s48, s48, s{S_C8}")
    A("s_mul_i32 s48, s48, 192")
    A(f"s_mul_i32 s49, s{S_W}, {64*2752}")
    A("s_add_u32 s48, s48, s49")
    A(f"s_mul_i32 s49, s{S_W}, {4*3072}")
    for k in range(4):
        for n in range(3):
            A(f"s_add_u32 m0, s49, {W1BASE + k*3072 + n*1024}")
            A(f"s_add_u32 s47, s48, {k*16*2752}")
            A(f"buffer_load_dwordx4 v{v0+n}, {OS}, s47 offen lds")

def p2(A):
    Q = QREG
    KF, VF, MK, MP = 8, 44, 116, 132
    T0, T1, T2, NM, O, P, VT = 140, 156, 172, 188, 204, 220, 236
    A(f"s_and_b32 s26, s{S_W}, 1")
    A(f"s_lshl_b32 s28, s{S_RB64}, 1")
    A("s_add_u32 s28, s28, s26")
    A(f"s_bfe_u32 s27, s{S_W}, 0x10001")
    A("s_lshl_b32 s27, s27, 1")
    A(f"s_lshr_b32 s29, s{S_W}, 2")
    A("s_add_u32 s29, s29, s27")
    A(f"s_lshl_b32 s27, s{S_C8}, 2")
    A("s_add_u32 s29, s29, s27")
    A("s_sub_i32 s30, 8, s28")
    A("s_max_i32 s30, s30, 0")
    A(f"v_lshlrev_b32 v{VT}, 4, v{V_LANE}")
    A("s_lshl_b32 s31, s28, 5")
    A("s_add_u32 s31, s31, s29")
    A("s_lshl_b32 s31, s31, 10")
    A(f"v_lshrrev_b32 v{VT+1}, 5, v{V_LANE}")
    A(f"v_lshlrev_b32 v{VT+1}, 8, v{VT+1}")
    A(f"v_and_b32 v{VT+2}, 15, v{V_LANE}")
    A(f"v_lshlrev_b32 v{VT+2}, 4, v{VT+2}")
    A(f"v_add_u32 v{VT+1}, v{VT+1}, v{VT+2}")
    for r in range(72):
        A(f"v_mov_b32 v{VF+r}, 0x3f803f80")
    A(f"v_and_b32 v{VT+2}, 31, v{V_LANE}")
    A(f"v_lshrrev_b32 v{VT+3}, 5, v{V_LANE}")
    A(f"v_lshlrev_b32 v{VT+3}, 2, v{VT+3}")
    A(f"v_sub_u32 v{VT+2}, v{VT+2}, v{VT+3}")
    for r in range(16):
        c = 8*(r//4) + r%4
        A(f"v_subrev_u32 v{MK+r}, {c}, v{VT+2}")
        A(f"v_ashrrev_i32 v{MK+r}, 31, v{MK+r}")
        A(f"v_not_b32 v{MK+r}, v{MK+r}")
    A(f"v_mov_b32 v{VT+4}, 0xffff")
    for p in range(8):
        A(f"v_bfi_b32 v{MP+p}, v{VT+4}, v{MK+2*p}, v{MK+2*p+1}")
    VWD = 2; VW1 = 3
    g2_dma_setup(A, VWD, T0, P_WO, 512*512*2, False)
    def ps():
        A(f"s_lshl_b32 s{S_FOFF}, s{S_C8}, 7")
        A(f"s_lshl_b32 s6, s{S_RB64}, 2")
        A(f"s_add_u32 s{S_FOFF}, s{S_FOFF}, s6")
        A(f"s_add_u32 s{S_FOFF}, s{S_FOFF}, {F1 - 16}")
        A(f"v_lshlrev_b32 v{V_POFF}, 2, v{V_LANE}")
        A(f"s_min_u32 s6, s{S_RB64}, 4")
        A("s_sub_u32 s6, 4, s6")
        A("s_lshl_b32 s6, 15, s6")
        A("s_and_b32 s6, s6, 15")
        A("s_mov_b32 s7, 0")
    poll(A, ps)
    stamp(A, 5)
    for u in range(9):
        A(f"s_add_i32 s33, s28, {u-8}")
        A("s_max_i32 s33, s33, 0")
        A("s_lshl_b32 s33, s33, 5")
        A("s_add_u32 s33, s33, s29")
        A("s_lshl_b32 s33, s33, 10")
        A(f"s_add_u32 s34, s33, {KF_OFF}")
        A(f"buffer_load_dwordx4 {vr(KF+4*u,4)}, v{VT}, {WS}, s34 offen sc1")
    A("s_mov_b32 s36, 0x0000ffff\ns_mov_b32 s37, 0x0000ffff")
    A("s_mov_b64 exec, s[36:37]")
    for u in range(9):
        A(f"s_add_i32 s33, s28, {u-8}")
        A("s_max_i32 s33, s33, 0")
        A("s_lshl_b32 s33, s33, 5")
        A("s_add_u32 s33, s33, s29")
        A("s_lshl_b32 s33, s33, 10")
        A(f"s_add_u32 s34, s33, {VF_OFF}")
        A(f"buffer_load_dwordx4 {vr(VF+8*u,4)}, v{VT+1}, {WS}, s34 offen sc1")
        A(f"buffer_load_dwordx4 {vr(VF+8*u+4,4)}, v{VT+1}, {WS}, s34 offen offset:512 sc1")
    A("s_mov_b64 exec, -1")
    for s in range(8):
        g2_dma(A, VWD, s, s)
    w1_dma(A, VW1, T0)
    ND = 20
    NEG = f2u(-1e30)
    def qk(dst, u, c):
        A(f"v_mfma_f32_32x32x16_bf16 {vr(dst,16)}, {vr(KF+4*u,4)}, {vr(Q,4)}, {c}")
    A(f"s_waitcnt vmcnt({18+ND})")
    stamp(A, 6)
    M0, M1 = VT+5, VT+6
    qk(T1, 8, "0")
    l0 = A.label("t0inv"); l1 = A.label("t0done")
    A(f"s_cmp_lg_u32 s30, 0\ns_cbranch_scc1 {l0}")
    qk(T0, 0, "0")
    A(f"s_branch {l1}")
    A(f"{l0}:")
    for r in range(16):
        A(f"v_mov_b32 v{T0+r}, {NEG:#x}")
    A(f"{l1}:")
    A("s_nop 15")
    for r in range(16):
        A(f"v_bfi_b32 v{T0+r}, v{MK+r}, v{T1+r}, v{T0+r}")
    A(f"v_max_f32 v{M0}, v{T0}, v{T0+1}")
    A(f"v_max_f32 v{M1}, v{T0+2}, v{T0+3}")
    for r in range(4, 16, 4):
        A(f"v_max3_f32 v{M0}, v{T0+r}, v{T0+r+1}, v{M0}")
        A(f"v_max3_f32 v{M1}, v{T0+r+2}, v{T0+r+3}, v{M1}")
    for u in range(1, 8):
        ls = A.label("skip1")
        A(f"s_cmp_gt_u32 s30, {u}\ns_cbranch_scc1 {ls}")
        T = T1 if u % 2 else T2
        qk(T, u, "0")
        A("s_nop 15")
        for r in range(0, 16, 4):
            A(f"v_max3_f32 v{M0}, v{T+r}, v{T+r+1}, v{M0}")
            A(f"v_max3_f32 v{M1}, v{T+r+2}, v{T+r+3}, v{M1}")
        A(f"{ls}:")
    A(f"v_max_f32 v{M0}, v{M0}, v{M1}")
    A(f"v_mov_b32 v{M1}, v{M0}")
    A("s_nop 1")
    A(f"v_permlane32_swap_b32 v{M0}, v{M1}")
    A("s_nop 1")
    A(f"v_max_f32 v{M0}, v{M0}, v{M1}")
    for r in range(16):
        A(f"v_sub_f32 v{NM+r}, 0, v{M0}")
    for r in range(16):
        A(f"v_mov_b32 v{O+r}, 0")
    A(f"s_waitcnt vmcnt({ND})")
    def pv(u, pk):
        A(f"v_mfma_f32_32x32x16_bf16 {vr(O,16)}, {vr(VF+8*u,4)}, {vr(pk,4)}, {vr(O,16)}")
        A(f"v_mfma_f32_32x32x16_bf16 {vr(O,16)}, {vr(VF+8*u+4,4)}, {vr(pk+4,4)}, {vr(O,16)}")
    def exp_pack(T, pk):
        for r in range(16):
            A(f"v_exp_f32 v{T+r}, v{T+r}")
        A("s_nop 0")
        for p in range(8):
            A(f"v_cvt_pk_bf16_f32 v{pk+p}, v{T+2*p}, v{T+2*p+1}")
    A("s_nop 1")
    qk(T1, 8, vr(NM,16))
    l0 = A.label("t0inv"); l1 = A.label("t0done")
    A(f"s_cmp_lg_u32 s30, 0\ns_cbranch_scc1 {l0}")
    qk(T0, 0, vr(NM,16))
    A(f"s_branch {l1}")
    A(f"{l0}:")
    for r in range(16):
        A(f"v_mov_b32 v{T0+r}, {NEG:#x}")
    A(f"{l1}:")
    A("s_nop 15")
    for r in range(16):
        A(f"v_bfi_b32 v{T0+r}, v{MK+r}, v{T1+r}, v{T0+r}")
    exp_pack(T0, P)
    for p in range(8):
        A(f"v_and_b32 v{P+8+p}, v{P+p}, v{MP+p}")
        A(f"v_xor_b32 v{P+p}, v{P+p}, v{P+8+p}")
    A("s_nop 1")
    pv(8, P+8)
    lz = A.label("nov0")
    A(f"s_cmp_lg_u32 s30, 0\ns_cbranch_scc1 {lz}")
    pv(0, P)
    A(f"{lz}:")
    for u in range(1, 8):
        ls = A.label("skip2")
        A(f"s_cmp_gt_u32 s30, {u}\ns_cbranch_scc1 {ls}")
        T = T1 if u % 2 else T2
        pk = P + 8*(u % 2)
        qk(T, u, vr(NM,16))
        A("s_nop 15")
        exp_pack(T, pk)
        A("s_nop 1")
        pv(u, pk)
        A(f"{ls}:")
    stamp(A, 7)
    A("s_nop 15")
    A(f"v_rcp_f32 v{VT+7}, v{O+8}")
    A("s_nop 0")
    for r in range(8):
        A(f"v_mul_f32 v{O+r}, v{O+r}, v{VT+7}")
    for p in range(4):
        A(f"v_cvt_pk_bf16_f32 v{P+p}, v{O+2*p}, v{O+2*p+1}")
    A(f"s_add_u32 s32, s31, {OF_OFF}")
    A(f"buffer_store_dwordx4 {vr(P,4)}, v{VT}, {WS}, s32 offen sc1")
    A("s_waitcnt vmcnt(0)")
    A("s_barrier")
    def fs():
        A(f"s_lshl_b32 s{S_FOFF}, s{S_RB64}, 7")
        A(f"s_lshl_b32 s6, s{S_C8}, 2")
        A(f"s_add_u32 s{S_FOFF}, s{S_FOFF}, s6")
        A(f"s_add_u32 s{S_FOFF}, s{S_FOFF}, {F2}")
    flag_store(A, fs)
    stamp(A, 8)

def gemm2(A, mode):
    op = (mode == "oproj")
    NKS = 32 if op else 86
    if op: qlen = 8; SLOTS = 8
    else:  qlen = 22; SLOTS = 20
    MAXL = qlen
    XF = 64; ACC = 160; WF = 192; E = 208
    V_WA = 2
    V_T = 8
    VWD = 20
    A(f"s_and_b32 s26, s{S_W}, 1")
    A(f"s_lshr_b32 s27, s{S_W}, 1")
    A(f"s_lshl_b32 s28, s{S_RB64}, 1")
    A("s_add_u32 s28, s28, s26")
    if op:
        srd(A, SRD_X, P_X, 2048*512*2)
        A("s_lshl_b32 s29, s27, 3")
    else:
        srd(A, SRD_X, P_B2, 512*2)
        srd(A, SRD_O, P_OUT, 2048*512*2)
        A("s_mul_i32 s29, s27, 22")
        A("s_cmp_eq_u32 s27, 3\ns_cselect_b32 s30, 1, 0\ns_sub_u32 s29, s29, s30")
        g2_dma_setup(A, VWD, V_T, P_W2, 1376*512*2, True)
    A(f"v_lshlrev_b32 v{V_T}, 4, v{V_LANE}")
    A(f"s_mul_i32 s34, s28, {NKS}")
    A("s_add_u32 s34, s34, s29")
    A("s_lshl_b32 s34, s34, 10")
    A(f"s_add_u32 s34, s34, {OF_OFF if op else H1_OFF}")
    A(f"v_lshrrev_b32 v{V_T+7}, 5, v{V_LANE}")
    A(f"v_and_b32 v{V_T+8}, 31, v{V_LANE}")
    RES = E + 24; BB = E + 28
    if op:
        A(f"v_lshlrev_b32 v{V_T+9}, 10, v{V_T+8}")
        A(f"v_lshlrev_b32 v{V_T+10}, 3, v{V_T+7}")
        A(f"v_add_u32 v{V_T+9}, v{V_T+9}, v{V_T+10}")
        A("s_lshl_b32 s35, s28, 15")
        A(f"s_lshl_b32 s36, s{S_C8}, 7")
        A("s_add_u32 s35, s35, s36")
        A("s_lshl_b32 s36, s27, 5")
        A("s_add_u32 s35, s35, s36")
        A(f"buffer_load_dwordx2 {vr(RES,2)}, v{V_T+9}, {XS}, s35 offen")
        A(f"buffer_load_dwordx2 {vr(RES+2,2)}, v{V_T+9}, {XS}, s35 offen offset:16")
    else:
        A(f"v_lshlrev_b32 v{V_T+10}, 3, v{V_T+7}")
        A(f"s_lshl_b32 s35, s{S_C8}, 7")
        A("s_lshl_b32 s36, s27, 5")
        A("s_add_u32 s35, s35, s36")
        A(f"buffer_load_dwordx2 {vr(BB,2)}, v{V_T+10}, {XS}, s35 offen")
        A(f"buffer_load_dwordx2 {vr(BB+2,2)}, v{V_T+10}, {XS}, s35 offen offset:16")
    A(f"v_lshlrev_b32 v{V_T+4}, 9, v{V_T+7}")
    A(f"v_bfe_u32 v{V_T+5}, v{V_LANE}, 2, 2")
    A(f"v_lshlrev_b32 v{V_T+5}, 7, v{V_T+5}")
    A(f"v_add_u32 v{V_T+4}, v{V_T+4}, v{V_T+5}")
    A(f"v_bfe_u32 v{V_T+5}, v{V_LANE}, 3, 1")
    A(f"v_lshlrev_b32 v{V_T+5}, 6, v{V_T+5}")
    A(f"v_add_u32 v{V_T+4}, v{V_T+4}, v{V_T+5}")
    A(f"v_bfe_u32 v{V_T+5}, v{V_LANE}, 4, 1")
    A(f"v_lshlrev_b32 v{V_T+5}, 5, v{V_T+5}")
    A(f"v_add_u32 v{V_T+4}, v{V_T+4}, v{V_T+5}")
    A(f"v_and_b32 v{V_T+5}, 3, v{V_LANE}")
    A(f"v_lshlrev_b32 v{V_T+5}, 3, v{V_T+5}")
    A(f"v_add_u32 v{V_T+4}, v{V_T+4}, v{V_T+5}")
    A("s_lshl_b32 s36, s27, 11")
    A(f"v_add_u32 v{V_WA}, s36, v{V_T+4}")
    A(f"v_xor_b32 v{V_WA+1}, 64, v{V_WA}")
    if not op:
        for g in (1, 2):
            A(f"v_add_u32 v{V_WA+2*g}, {65536*g}, v{V_WA}")
            A(f"v_add_u32 v{V_WA+2*g+1}, {65536*g}, v{V_WA+1}")
    for r in range(32):
        A(f"v_mov_b32 v{ACC+r}, 0")
    def ps():
        A(f"v_lshlrev_b32 v{V_POFF}, 2, v{V_LANE}")
        if op:
            A(f"s_lshl_b32 s{S_FOFF}, s{S_RB64}, 7")
            A(f"s_add_u32 s{S_FOFF}, s{S_FOFF}, {F2}")
            A("s_mov_b64 s[6:7], 0xff")
        else:
            A(f"s_lshr_b32 s{S_FOFF}, s{S_RB64}, 1")
            A(f"s_lshl_b32 s{S_FOFF}, s{S_FOFF}, 7")
            A(f"s_add_u32 s{S_FOFF}, s{S_FOFF}, {F4}")
            A("s_mov_b64 s[6:7], 0xffff")
    def mid():
        for s in range(8, 16):
            g2_dma(A, VWD, s, s)
    if op: poll(A, ps)
    else:  poll(A, ps, pre_other=mid, post_poll=mid)
    stamp(A, 9 if op else 17)
    for s in range(MAXL):
        A(f"buffer_load_dwordx4 {vr(XF+4*s,4)}, v{V_T}, {WS}, s34 offen offset:{(s%4)*1024} sc1")
        if s % 4 == 3:
            A("s_add_u32 s34, s34, 4096")
    def wread(setidx, slot):
        g = slot // 8
        for t in range(2):
            base = WF + 8*setidx + 4*t
            off = (slot % 8)*8192
            A(f"ds_read_b64_tr_b16 {vr(base,2)}, v{V_WA+2*g+t} offset:{off}")
            A(f"ds_read_b64_tr_b16 {vr(base+2,2)}, v{V_WA+2*g+t} offset:{off+1024}")
    wread(0, 0)
    extra = MAXL - SLOTS if MAXL > SLOTS else 0
    XB = 2
    for s in range(MAXL):
        cur = s % 2
        last = (s == MAXL - 1)
        guard = (not op) and last
        if extra and s == XB:
            A("s_waitcnt lgkmcnt(0)")
            A("s_barrier")
            for e in range(extra):
                g2_dma(A, VWD, e, SLOTS + e)
        if extra and s == SLOTS - 1:
            A("s_waitcnt vmcnt(0)")
            A("s_barrier")
        if not last:
            wread(1-cur, (s+1) % SLOTS)
        rem = MAXL - 1 - s + (extra if (extra and s >= XB and s < SLOTS-1) else 0)
        if not (extra and s >= SLOTS - 1):
            A(f"s_waitcnt vmcnt({min(rem,63)}) lgkmcnt({0 if last else 4})")
        else:
            A(f"s_waitcnt lgkmcnt({0 if last else 4})")
        if s == 0: stamp(A, 10 if op else 18)
        if guard:
            lg = A.label("g")
            A(f"s_cmp_ge_u32 s27, 2\ns_cbranch_scc1 {lg}")
        for t in range(2):
            A(f"v_mfma_f32_32x32x16_bf16 {vr(ACC+16*t,16)}, {vr(WF+8*cur+4*t,4)}, {vr(XF+4*s,4)}, {vr(ACC+16*t,16)}")
        if guard:
            A(f"{lg}:")
    stamp(A, 11 if op else 19)
    A("s_nop 15")
    A("s_barrier")
    A("s_lshl_b32 s36, s26, 15")
    A("s_lshl_b32 s37, s27, 11")
    A("s_add_u32 s36, s36, s37")
    A(f"v_add_u32 v{V_T+1}, s36, v{V_T}")
    for d in range(4):
        A(f"ds_write_b128 v{V_T+1}, {vr(ACC+8*d,4)} offset:{d*8192}")
        A(f"ds_write_b128 v{V_T+1}, {vr(ACC+8*d+4,4)} offset:{d*8192+1024}")
    R = RES if op else HRES
    A("s_waitcnt vmcnt(0)")
    for p in range(4):
        A(f"v_lshlrev_b32 v{E+2*p}, 16, v{R+p}")
        A(f"v_and_b32 v{E+2*p+1}, 0xffff0000, v{R+p}")
    if not op:
        for p in range(4):
            A(f"v_lshlrev_b32 v{E+8+2*p}, 16, v{BB+p}")
            A(f"v_and_b32 v{E+8+2*p+1}, 0xffff0000, v{BB+p}")
        for r in range(8):
            A(f"v_add_f32 v{E+r}, v{E+r}, v{E+8+r}")
    A("s_waitcnt lgkmcnt(0)")
    A("s_barrier")
    A("s_lshl_b32 s36, s26, 15")
    A("s_lshl_b32 s37, s27, 13")
    A("s_add_u32 s36, s36, s37")
    A(f"v_add_u32 v{V_T+1}, s36, v{V_T}")
    for sq in range(4):
        A(f"ds_read_b128 {vr(XF+8*sq,4)}, v{V_T+1} offset:{sq*2048}")
        A(f"ds_read_b128 {vr(XF+8*sq+4,4)}, v{V_T+1} offset:{sq*2048+1024}")
    A("s_waitcnt lgkmcnt(4)")
    for r in range(8):
        A(f"v_add_f32 v{XF+r}, v{XF+r}, v{XF+8+r}")
        A(f"v_add_f32 v{XF+r}, v{XF+r}, v{E+r}")
    A("s_waitcnt lgkmcnt(0)")
    for r in range(8):
        A(f"v_add_f32 v{XF+16+r}, v{XF+16+r}, v{XF+24+r}")
        A(f"v_add_f32 v{XF+r}, v{XF+r}, v{XF+16+r}")
    if op:
        for p in range(4):
            A(f"v_cvt_pk_bf16_f32 v{HRES+p}, v{XF+2*p}, v{XF+2*p+1}")
        A("s_lshl_b32 s35, s28, 5")
        A(f"s_lshl_b32 s36, s{S_C8}, 2")
        A("s_add_u32 s35, s35, s36")
        A("s_add_u32 s35, s35, s27")
        A("s_lshl_b32 s35, s35, 10")
        A(f"s_add_u32 s35, s35, {HF_OFF}")
        A(f"buffer_store_dwordx4 {vr(HRES,4)}, v{V_T}, {WS}, s35 offen sc1")
        A("s_waitcnt vmcnt(0)")
        A("s_barrier")
        def fs():
            A(f"s_lshl_b32 s{S_FOFF}, s{S_RB64}, 7")
            A(f"s_lshl_b32 s6, s{S_C8}, 2")
            A(f"s_add_u32 s{S_FOFF}, s{S_FOFF}, s6")
            A(f"s_add_u32 s{S_FOFF}, s{S_FOFF}, {F3}")
        flag_store(A, fs)
        stamp(A, 12)
    else:
        for p in range(4):
            A(f"v_cvt_pk_bf16_f32 v{E+16+p}, v{XF+2*p}, v{XF+2*p+1}")
        A("s_nop 1")
        A(f"v_permlane32_swap_b32 v{E+16}, v{E+18}")
        A(f"v_permlane32_swap_b32 v{E+17}, v{E+19}")
        A(f"v_lshlrev_b32 v{V_T+9}, 10, v{V_T+8}")
        A(f"v_lshlrev_b32 v{V_T+10}, 4, v{V_T+7}")
        A(f"v_add_u32 v{V_T+9}, v{V_T+9}, v{V_T+10}")
        A("s_lshl_b32 s35, s28, 15")
        A(f"s_lshl_b32 s36, s{S_C8}, 7")
        A("s_add_u32 s35, s35, s36")
        A("s_lshl_b32 s36, s27, 5")
        A("s_add_u32 s35, s35, s36")
        A("s_nop 0")
        A(f"buffer_store_dwordx4 {vr(E+16,4)}, v{V_T+9}, {OS}, s35 offen")
        stamp(A, 20)

def p4(A):
    V_WA = 2
    V_T = 4
    V_SUM, V_SQ, V_CS = 16, 17, 18
    VWD = 21
    SB = 65536
    A(f"s_lshr_b32 s24, s{S_RB64}, 1")
    A(f"s_and_b32 s25, s{S_RB64}, 1")
    A("s_lshl_b32 s25, s25, 3")
    A(f"s_add_u32 s25, s25, s{S_C8}")
    A(f"s_and_b32 s26, s{S_W}, 3")
    A(f"s_lshr_b32 s27, s{S_W}, 2")
    A("s_lshl_b32 s28, s24, 2")
    A("s_add_u32 s28, s28, s26")
    srd(A, SRD_O, P_B1, 1376*2)
    g2_dma_setup(A, VWD, V_T, P_W2, 1376*512*2, True)
    A(f"v_lshlrev_b32 v{V_T}, 4, v{V_LANE}")
    A("s_lshl_b32 s29, s28, 5")
    A("s_lshl_b32 s30, s27, 4")
    A("s_add_u32 s29, s29, s30")
    A("s_lshl_b32 s29, s29, 10")
    A(f"s_add_u32 s29, s29, {HF_OFF}")
    B1 = 36
    A(f"v_lshrrev_b32 v{V_T+7}, 5, v{V_LANE}")
    A(f"v_lshlrev_b32 v{V_T+10}, 3, v{V_T+7}")
    A("s_mul_i32 s40, s25, 192")
    A("s_lshl_b32 s41, s27, 6")
    A("s_add_u32 s41, s41, s40")
    for j in range(4):
        A(f"buffer_load_dwordx2 {vr(B1+2*j,2)}, v{V_T+10}, {OS}, s41 offen offset:{16*j}")
    A("s_lshl_b32 s41, s27, 5")
    A("s_add_u32 s41, s41, s40")
    A("s_add_u32 s41, s41, 128")
    for j in range(2):
        A(f"buffer_load_dwordx2 {vr(B1+8+2*j,2)}, v{V_T+10}, {OS}, s41 offen offset:{16*j}")
    A(f"v_mul_u32_u24 v{V_T+4}, 768, v{V_T+7}")
    A(f"v_bfe_u32 v{V_T+5}, v{V_LANE}, 2, 2")
    A(f"v_mul_u32_u24 v{V_T+5}, 192, v{V_T+5}")
    A(f"v_add_u32 v{V_T+4}, v{V_T+4}, v{V_T+5}")
    A(f"v_bfe_u32 v{V_T+5}, v{V_LANE}, 4, 1")
    A(f"v_lshlrev_b32 v{V_T+5}, 5, v{V_T+5}")
    A(f"v_add_u32 v{V_T+4}, v{V_T+4}, v{V_T+5}")
    A(f"v_and_b32 v{V_T+5}, 3, v{V_LANE}")
    A(f"v_lshlrev_b32 v{V_T+5}, 3, v{V_T+5}")
    A(f"v_add_u32 v{V_T+4}, v{V_T+4}, v{V_T+5}")
    A("s_mul_i32 s36, s27, 49152")
    A(f"s_add_u32 s36, s36, {W1BASE}")
    A(f"v_add_u32 v{V_WA}, s36, v{V_T+4}")
    for r in range(48):
        A(f"v_mov_b32 v{ACC+r}, 0")
    for r in [V_SUM, V_SQ, V_CS, V_CS+1, V_CS+2]:
        A(f"v_mov_b32 v{r}, 0")
    A("s_mov_b32 s37, 0x3f803f80")
    def wread(areg, setidx, s):
        for t in range(3):
            base = WF + 12*setidx + 4*t
            off = s*3072 + t*64
            A(f"ds_read_b64_tr_b16 {vr(base,2)}, v{areg} offset:{off}")
            A(f"ds_read_b64_tr_b16 {vr(base+2,2)}, v{areg} offset:{off+1536}")
    A("s_mul_i32 s38, s26, 3072")
    A(f"v_add_u32 v{V_T+8}, s38, v{V_WA}")
    for u2 in range(2):
        for u in range(2):
            wread(V_T+8, u, 4*(2*u2+u))
        for u in range(2):
            A(f"s_waitcnt lgkmcnt({6 if u == 0 else 0})")
            for t in range(3):
                for d in range(4):
                    A(f"v_dot2c_f32_bf16 v{V_CS+t}, s37, v{WF+12*u+4*t+d}")
    def ps():
        A(f"v_lshrrev_b32 v{V_POFF}, 3, v{V_LANE}")
        A(f"v_lshlrev_b32 v{V_POFF}, 7, v{V_POFF}")
        A(f"v_and_b32 v{V_POLL}, 7, v{V_LANE}")
        A(f"v_lshlrev_b32 v{V_POLL}, 2, v{V_POLL}")
        A(f"v_add_u32 v{V_POFF}, v{V_POFF}, v{V_POLL}")
        A(f"s_lshl_b32 s{S_FOFF}, s24, 8")
        A(f"s_add_u32 s{S_FOFF}, s{S_FOFF}, {F3}")
        A("s_mov_b64 s[6:7], 0xffff")
    lend = A.label("p4end")
    lidle = A.label("p4idle")
    A(f"s_cmp_eq_u32 s25, 15\ns_cbranch_scc1 {lidle}")
    poll(A, ps)
    stamp(A, 13)
    for s in range(16):
        A(f"buffer_load_dwordx4 {vr(XF+4*s,4)}, v{V_T}, {WS}, s29 offen offset:{(s%4)*1024} sc1")
        if s % 4 == 3:
            A("s_add_u32 s29, s29, 4096")
    for s in range(8):
        g2_dma(A, VWD, s, s)
    wread(V_WA, 0, 0)
    for s in range(16):
        cur = s % 2
        if s + 1 < 16:
            wread(V_WA, 1-cur, s+1)
        A(f"s_waitcnt vmcnt({15-s+8}) lgkmcnt({6 if s+1 < 16 else 0})")
        if s == 0: stamp(A, 14)
        x = vr(XF+4*s, 4)
        for t in range(3):
            A(f"v_mfma_f32_32x32x16_bf16 {vr(ACC+16*t,16)}, {vr(WF+12*cur+4*t,4)}, {x}, {vr(ACC+16*t,16)}")
        for d in range(4):
            A(f"v_dot2c_f32_bf16 v{V_SUM}, s37, v{XF+4*s+d}")
            A(f"v_dot2c_f32_bf16 v{V_SQ}, v{XF+4*s+d}, v{XF+4*s+d}")
    stamp(A, 15)
    A("s_nop 7")
    A("s_barrier")
    for s in range(16, 20):
        g2_dma(A, VWD, s, s)
    EXs, STs, CSPs, PRVs = SB+EX, SB+ST, SB+CSP, SB+PRV
    A(f"s_mul_i32 s38, s{S_W}, 6144")
    A(f"s_add_u32 s38, s38, {SB}")
    A(f"v_add_u32 v{V_T+1}, s38, v{V_T}")
    lk1 = A.label("k1"); lj = A.label("j")
    A("s_nop 7")
    A(f"s_cmp_eq_u32 s27, 1\ns_cbranch_scc1 {lk1}")
    for c in range(4):
        A(f"ds_write_b128 v{V_T+1}, {vr(ACC+16+4*c,4)} offset:{EX + c*1024}")
    for c in range(2):
        A(f"ds_write_b128 v{V_T+1}, {vr(ACC+32+8+4*c,4)} offset:{EX + (4+c)*1024}")
    A(f"s_branch {lj}")
    A(f"{lk1}:")
    for c in range(4):
        A(f"ds_write_b128 v{V_T+1}, {vr(ACC+4*c,4)} offset:{EX + c*1024}")
    for c in range(2):
        A(f"ds_write_b128 v{V_T+1}, {vr(ACC+32+4*c,4)} offset:{EX + (4+c)*1024}")
    A(f"{lj}:")
    A(f"v_lshlrev_b32 v{V_T+2}, 3, v{V_LANE}")
    A(f"s_lshl_b32 s38, s{S_W}, 9")
    A(f"s_add_u32 s38, s38, {SB}")
    A(f"v_add_u32 v{V_T+2}, s38, v{V_T+2}")
    A(f"ds_write_b64 v{V_T+2}, {vr(V_SUM,2)} offset:{ST}")
    A(f"v_lshlrev_b32 v{V_T+3}, 2, v{V_LANE}")
    A(f"v_add_u32 v{V_T+3}, {SB}, v{V_T+3}")
    A(f"s_mul_i32 s38, s{S_W}, 768")
    A(f"v_add_u32 v{V_T+5}, s38, v{V_T+3}")
    for t in range(3):
        A(f"ds_write_b32 v{V_T+5}, v{V_CS+t} offset:{CSP + t*256}")
    A("s_waitcnt lgkmcnt(0)")
    A("s_barrier")
    A(f"s_xor_b32 s38, s{S_W}, 4")
    A("s_mul_i32 s38, s38, 6144")
    A(f"s_add_u32 s38, s38, {SB}")
    A(f"v_add_u32 v{V_T+1}, s38, v{V_T}")
    S0 = E + 24; C0 = E + 32
    A(f"v_and_b32 v{V_T+2}, 31, v{V_LANE}")
    A(f"v_lshlrev_b32 v{V_T+2}, 3, v{V_T+2}")
    A("s_lshl_b32 s38, s26, 9")
    A(f"s_add_u32 s38, s38, {SB}")
    A(f"v_add_u32 v{V_T+2}, s38, v{V_T+2}")
    A(f"ds_read_b64 {vr(S0,2)}, v{V_T+2} offset:{ST}")
    A(f"ds_read_b64 {vr(S0+2,2)}, v{V_T+2} offset:{ST+256}")
    A(f"ds_read_b64 {vr(S0+4,2)}, v{V_T+2} offset:{ST+2048}")
    A(f"ds_read_b64 {vr(S0+6,2)}, v{V_T+2} offset:{ST+2048+256}")
    A("s_lshl_b32 s38, s27, 8")
    A(f"v_add_u32 v{V_T+4}, s38, v{V_T+3}")
    for w in range(8):
        A(f"ds_read_b32 v{C0+w}, v{V_T+4} offset:{CSP + w*768}")
    A("s_waitcnt lgkmcnt(8)")
    for w in range(8):
        A(f"ds_read_b32 v{C0+8+w}, v{V_T+3} offset:{CSP + w*768 + 512}")
    A(f"v_add_f32 v{S0}, v{S0}, v{S0+2}")
    A(f"v_add_f32 v{S0+4}, v{S0+4}, v{S0+6}")
    A(f"v_add_f32 v{S0+1}, v{S0+1}, v{S0+3}")
    A(f"v_add_f32 v{S0+5}, v{S0+5}, v{S0+7}")
    A(f"v_add_f32 v{S0}, v{S0}, v{S0+4}")
    A(f"v_add_f32 v{S0+1}, v{S0+1}, v{S0+5}")
    A(f"v_mul_f32 v{S0}, {f2u(1.0/512):#x}, v{S0}")
    A(f"v_mul_f32 v{S0+1}, {f2u(1.0/512):#x}, v{S0+1}")
    A(f"v_fma_f32 v{S0+1}, -v{S0}, v{S0}, v{S0+1}")
    A(f"v_max_f32 v{S0+1}, 0, v{S0+1}")
    A(f"v_add_f32 v{S0+1}, {f2u(1e-5):#x}, v{S0+1}")
    A(f"v_rsq_f32 v{S0+1}, v{S0+1}")
    A("s_waitcnt lgkmcnt(8)")
    for c in range(6):
        A(f"ds_read_b128 {vr(E+4*c,4)}, v{V_T+1} offset:{EX + c*1024}")
    A(f"v_mul_f32 v{S0}, v{S0}, v{S0+1}")
    for w in range(1, 8):
        A(f"v_add_f32 v{C0}, v{C0}, v{C0+w}")
    A(f"v_mov_b32 v{C0+1}, v{C0}")
    A("s_waitcnt lgkmcnt(6)")
    for w in range(1, 8):
        A(f"v_add_f32 v{C0+8}, v{C0+8}, v{C0+8+w}")
    A(f"v_mov_b32 v{C0+9}, v{C0+8}")
    A("s_nop 1")
    A(f"v_permlane32_swap_b32 v{C0}, v{C0+1}")
    A(f"v_permlane32_swap_b32 v{C0+8}, v{C0+9}")
    A("s_nop 1")
    A(f"v_add_f32 v{C0}, v{C0}, v{C0+1}")
    A(f"v_add_f32 v{C0+8}, v{C0+8}, v{C0+9}")
    A(f"v_and_b32 v{V_T+5}, 31, v{V_LANE}")
    A(f"s_lshl_b32 s38, s{S_W}, 9")
    A(f"s_add_u32 s38, s38, {SB}")
    A(f"v_lshlrev_b32 v{V_T+6}, 2, v{V_T+5}")
    A(f"v_add_u32 v{V_T+6}, s38, v{V_T+6}")
    A(f"ds_write_b32 v{V_T+6}, v{C0} offset:{PRV+256}")
    A(f"ds_write_b32 v{V_T+6}, v{C0+8} offset:{PRV+384}")
    A(f"v_lshlrev_b32 v{V_T+8}, 4, v{V_T+7}")
    A(f"v_add_u32 v{V_T+8}, s38, v{V_T+8}")
    A("s_lshl_b32 s39, s27, 6")
    A(f"v_add_u32 v{V_T+9}, s39, v{V_T+8}")
    lk1 = A.label("k1"); lj = A.label("j")
    A("s_waitcnt lgkmcnt(2)")
    A(f"s_cmp_eq_u32 s27, 1\ns_cbranch_scc1 {lk1}")
    for r in range(16):
        A(f"v_add_f32 v{E+r}, v{E+r}, v{ACC+r}")
    for r in range(8):
        A(f"v_add_f32 v{E+16+r}, v{E+16+r}, v{ACC+32+r}")
    A(f"s_branch {lj}")
    A(f"{lk1}:")
    for r in range(16):
        A(f"v_add_f32 v{E+r}, v{E+r}, v{ACC+16+r}")
    for r in range(8):
        A(f"v_add_f32 v{E+16+r}, v{E+16+r}, v{ACC+40+r}")
    A(f"{lj}:")
    A("s_waitcnt lgkmcnt(0)")
    CSR = XF; CS2 = XF + 16; BU = XF + 40
    for j in range(4):
        A(f"ds_read_b128 {vr(CSR+4*j,4)}, v{V_T+8} offset:{PRV+256 + j*32}")
    for jj in range(2):
        A(f"ds_read_b128 {vr(CS2+4*jj,4)}, v{V_T+9} offset:{PRV+384 + jj*32}")
    for p in range(12):
        A(f"v_lshlrev_b32 v{BU+2*p}, 16, v{B1+p}")
        A(f"v_and_b32 v{BU+2*p+1}, 0xffff0000, v{B1+p}")
    C1 = -2.0 * LOG2E * 0.7978845608028654
    C3 = C1 * 0.044715
    A(f"s_mov_b32 s42, {f2u(C1):#x}\ns_mov_b32 s43, {f2u(C3):#x}")
    A(f"v_mov_b32 v{V_T+11}, s42")
    A("s_waitcnt lgkmcnt(0)")
    vals = [(E+r, CSR+r, BU+r) for r in range(16)] + [(E+16+r, CS2+r, BU+16+r) for r in range(8)]
    T1 = WF
    for g in range(0, 24, 4):
        grp = vals[g:g+4]
        for n, (a, cs, b) in enumerate(grp):
            A(f"v_fma_f32 v{b}, -v{S0}, v{cs}, v{b}")
        for n, (a, cs, b) in enumerate(grp):
            A(f"v_fma_f32 v{a}, v{a}, v{S0+1}, v{b}")
        for n, (a, cs, b) in enumerate(grp):
            A(f"v_mul_f32 v{T1+n}, v{a}, v{a}")
        for n, (a, cs, b) in enumerate(grp):
            A(f"v_fma_f32 v{T1+n}, v{T1+n}, s43, v{V_T+11}")
        for n, (a, cs, b) in enumerate(grp):
            A(f"v_mul_f32 v{T1+n}, v{T1+n}, v{a}")
        for n, (a, cs, b) in enumerate(grp):
            A(f"v_exp_f32 v{T1+n}, v{T1+n}")
        for n, (a, cs, b) in enumerate(grp):
            A(f"v_add_f32 v{T1+n}, 1.0, v{T1+n}")
        for n, (a, cs, b) in enumerate(grp):
            A(f"v_rcp_f32 v{T1+n}, v{T1+n}")
        for n, (a, cs, b) in enumerate(grp):
            A(f"v_mul_f32 v{a}, v{a}, v{T1+n}")
    PK = ACC
    for p in range(12):
        A(f"v_cvt_pk_bf16_f32 v{PK+p}, v{E+2*p}, v{E+2*p+1}")
    A("s_mul_i32 s40, s28, 86")
    A("s_mul_i32 s41, s25, 6")
    A("s_add_u32 s40, s40, s41")
    A("s_lshl_b32 s41, s27, 1")
    A("s_add_u32 s41, s41, s40")
    A("s_lshl_b32 s41, s41, 10")
    A(f"s_add_u32 s41, s41, {H1_OFF}")
    lskip = A.label("skip"); l2 = A.label("skip2")
    A("s_cmp_eq_u32 s25, 14\ns_cselect_b32 s42, 1, 0")
    A("s_and_b32 s43, s42, s27")
    A(f"s_cmp_eq_u32 s43, 1\ns_cbranch_scc1 {l2}")
    A(f"buffer_store_dwordx4 {vr(PK,4)}, v{V_T}, {WS}, s41 offen sc1")
    A(f"buffer_store_dwordx4 {vr(PK+4,4)}, v{V_T}, {WS}, s41 offen offset:1024 sc1")
    A(f"{l2}:")
    A(f"s_cmp_eq_u32 s42, 1\ns_cbranch_scc1 {lskip}")
    A("s_add_u32 s41, s40, s27")
    A("s_add_u32 s41, s41, 4")
    A("s_lshl_b32 s41, s41, 10")
    A(f"s_add_u32 s41, s41, {H1_OFF}")
    A(f"buffer_store_dwordx4 {vr(PK+8,4)}, v{V_T}, {WS}, s41 offen sc1")
    A(f"{lskip}:")
    A(f"s_branch {lend}")
    A(f"{lidle}:")
    for s in list(range(8)) + list(range(16, 20)):
        g2_dma(A, VWD, s, s)
    A(f"{lend}:")
    A("s_waitcnt vmcnt(0)")
    A("s_barrier")
    def fs():
        A(f"s_lshl_b32 s{S_FOFF}, s24, 7")
        A("s_lshl_b32 s6, s25, 2")
        A(f"s_add_u32 s{S_FOFF}, s{S_FOFF}, s6")
        A(f"s_add_u32 s{S_FOFF}, s{S_FOFF}, {F4}")
    flag_store(A, fs)
    stamp(A, 16)

HEADER = """; Kernarg layout (88 bytes): A_x, A_wqkv, A_wo, B_x, B_w1, B_b1, B_w2, B_b2, d_out, d_debug, d_ws
; @launch grid=(256,1,1) block=(512,1,1) lds=163840
"""

def build(nphase=5):
    A = Asm()
    K = NAME + "_kernel"
    A('.amdgcn_target "amdgcn-amd-amdhsa--gfx950"')
    A(".text")
    A(f".globl {K}\n.p2align 8\n.type {K},@function\n{K}:")
    stamp(A, 0)
    A("s_cmp_ge_u32 s2, 256\ns_cbranch_scc1 L_exit")
    A("s_load_dwordx16 s[64:79], s[0:1], 0")
    A("s_load_dwordx4 s[80:83], s[0:1], 64")
    A("s_load_dwordx2 s[84:85], s[0:1], 80")
    A(f"v_and_b32 v{V_LANE}, 63, v0")
    A("v_lshrrev_b32 v2, 6, v0")
    A("s_and_b32 s6, s2, 7")
    A(f"v_readfirstlane_b32 s{S_W}, v2")
    A("s_lshr_b32 s7, s2, 3")
    A(f"s_and_b32 s{S_C8}, s7, 7")
    A("s_lshr_b32 s7, s7, 3")
    A(f"s_lshl_b32 s{S_RB64}, s6, 2")
    A(f"s_add_u32 s{S_RB64}, s{S_RB64}, s7")
    A("s_waitcnt lgkmcnt(0)")
    srd(A, SRD_WS, P_WS, WS_BYTES)
    A(f"s_add_u32 s6, s{P_WS}, {EPOCH}")
    A(f"s_addc_u32 s7, s{P_WS+1}, 0")
    A(f"s_load_dword s{S_TAG}, s[6:7], 0")
    p1(A)
    if nphase >= 2: p2(A)
    if nphase >= 3: gemm2(A, "oproj")
    if nphase >= 4: p4(A)
    if nphase >= 5: gemm2(A, "ffn2")
    lastF, nl = {1: (F1, 256), 2: (F2, 0), 3: (F3, 0), 4: (F4, 256), 5: (F4, 256)}[nphase]
    le = A.label("ep")
    A(f"s_or_b32 s6, s2, s{S_W}")
    A(f"s_cmp_lg_u32 s6, 0\ns_cbranch_scc1 {le}")
    if nphase in (2, 3):
        A(f"v_lshrrev_b32 v{V_POFF}, 3, v{V_LANE}")
        A(f"v_lshlrev_b32 v{V_POFF}, 7, v{V_POFF}")
        A(f"v_and_b32 v{V_POLL}, 7, v{V_LANE}")
        A(f"v_lshlrev_b32 v{V_POLL}, 2, v{V_POLL}")
        A(f"v_add_u32 v{V_POFF}, v{V_POFF}, v{V_POLL}")
        step = 1024
    elif nphase == 1:
        A(f"v_lshlrev_b32 v{V_POFF}, 2, v{V_LANE}")
        step = 256
    else:
        A(f"v_lshrrev_b32 v{V_POFF}, 4, v{V_LANE}")
        A(f"v_lshlrev_b32 v{V_POFF}, 7, v{V_POFF}")
        A(f"v_and_b32 v{V_POLL}, 15, v{V_LANE}")
        A(f"v_lshlrev_b32 v{V_POLL}, 2, v{V_POLL}")
        A(f"v_add_u32 v{V_POFF}, v{V_POFF}, v{V_POLL}")
        step = 512
    for q in range(4):
        lp = A.label("el"); ld = A.label("ed")
        A(f"s_mov_b32 s{S_CNT}, {POLL_LIMIT}")
        A(f"s_mov_b32 s{S_FOFF}, {lastF + q*step}")
        A(f"{lp}:")
        A(f"buffer_load_dword v{V_POLL}, v{V_POFF}, {WS}, s{S_FOFF} offen sc1")
        A("s_waitcnt vmcnt(0)")
        A(f"v_cmp_ne_u32 vcc, s{S_TAG}, v{V_POLL}")
        A(f"s_cbranch_vccz {ld}")
        A(f"s_sub_u32 s{S_CNT}, s{S_CNT}, 1")
        A(f"s_cbranch_scc0 {lp}")
        A(f"{ld}:")
    A(f"s_mov_b32 s{S_FOFF}, {EPOCH}")
    A("s_mov_b64 exec, 1")
    A(f"v_mov_b32 v{V_POLL}, s{S_TAG}")
    A(f"buffer_store_dword v{V_POLL}, off, {WS}, s{S_FOFF} sc1")
    A("s_mov_b64 exec, -1")
    A(f"{le}:")
    if STAMPS:
        l = A.label("nost")
        A("s_waitcnt vmcnt(0)")
        stamp(A, 21)
        A(f"s_cmp_lg_u32 s{S_W}, 0\ns_cbranch_scc1 {l}")
        A("s_lshl_b32 s6, s2, 7")
        A(f"s_add_u32 s6, s6, {STAMP_OFF}")
        A(f"v_lshlrev_b32 v2, 2, v{V_LANE}")
        A("s_mov_b64 exec, 0xffffffff")
        A(f"buffer_store_dword v{V_STAMP}, v2, {WS}, s6 offen")
        A(f"{l}:")
    A("L_exit:")
    A("s_endpgm")
    A("L_codeend:")
    A('.section .rodata,"a"')
    A(f".p2align 6\n.amdhsa_kernel {K}")
    A("  .amdhsa_next_free_vgpr 256\n  .amdhsa_next_free_sgpr 102\n  .amdhsa_accum_offset 256")
    A("  .amdhsa_group_segment_fixed_size 0\n  .amdhsa_kernarg_size 88\n  .amdhsa_user_sgpr_count 2")
    A("  .amdhsa_user_sgpr_kernarg_segment_ptr 1\n  .amdhsa_system_sgpr_workgroup_id_x 1\n.end_amdhsa_kernel")
    return HEADER + A.text()

if __name__ == "__main__":
    import argparse
    ap = argparse.ArgumentParser()
    ap.add_argument("out", nargs="?", default=f"cdna_kernels/{NAME}.s")
    ap.add_argument("--stamps", action="store_true")
    ap.add_argument("--nphase", type=int, default=5)
    a = ap.parse_args()
    STAMPS = a.stamps
    import subprocess
    open("_g2.s", "w").write(build(a.nphase))
    subprocess.check_call(["clang", "-x", "assembler", "-target", "amdgcn-amd-amdhsa", "-mcpu=gfx950", "-c", "_g2.s", "-o", "_g2.o"])
    nm = subprocess.check_output(["llvm-objdump", "-t", "_g2.o"]).decode()
    sym = {l.split()[-1]: int(l.split()[0], 16) for l in nm.splitlines() if " L_" in l}
    if CODEWARM:
        CODE_SPAN = (sym["L_codeend"] - sym["L_pcref"] - 8) & ~127
    open(a.out, "w").write(build(a.nphase))
    print("wrote", a.out)
```
